```python
import torch

def _softmax(x, axis=-1):
    return torch.softmax(x, dim=axis)
def _gelu(x):
    return torch.nn.functional.gelu(x, approximate="tanh")
def _silu(x):
    return torch.nn.functional.silu(x)
def _sigmoid(x):
    return torch.sigmoid(x)
def _layernorm(x, axis=-1, eps=1e-5):
    m = x.mean(dim=axis, keepdim=True)
    v = x.var(dim=axis, keepdim=True, unbiased=False)
    return (x - m) / torch.sqrt(v + eps)
def _scatter_add(tgt, idx, src, axis=0):
    return tgt.clone().index_add_(axis, idx, src)
def _segment_sum(src, seg, n):
    out = torch.zeros((n,) + src.shape[1:], dtype=src.dtype)
    return out.index_add_(0, seg, src)
def _pad(x, pw):
    flat = tuple(v for pair in reversed(pw) for v in pair)
    return torch.nn.functional.pad(x, flat)

kernel_name = 'sequential_preLN__sliding_block__geglu_ffn__prompt'

def setup_inputs():

    _w = (lambda a: (lambda t: t.to(torch.bfloat16) if t.is_floating_point() else t)(torch.as_tensor(a)))
    def _A_setup():
        B, S, D = 1, 2048, 640
        return {
            "x": _w((lambda *s: torch.randn(*s, dtype=torch.bfloat16) * 0.05)(B, S, D)),
            "wqkv": _w((lambda *s: torch.randn(*s, dtype=torch.bfloat16) * 0.05)(D, 3 * D)),
            "wo": _w((lambda *s: torch.randn(*s, dtype=torch.bfloat16) * 0.05)(D, D)),
        }
    _A_in = _A_setup()

    def _B_setup():
        B, S, D, F = 1, 2048, 640, 1728
        return {
            "x": _w((lambda *s: torch.randn(*s, dtype=torch.bfloat16) * 0.05)(B, S, D)),
            "w_gate": _w((lambda *s: torch.randn(*s, dtype=torch.bfloat16) * 0.05)(D, F)),
            "w_up": _w((lambda *s: torch.randn(*s, dtype=torch.bfloat16) * 0.05)(D, F)),
            "w_down": _w((lambda *s: torch.randn(*s, dtype=torch.bfloat16) * 0.05)(F, D)),
        }
    _B_in = _B_setup()

    return {
        "A_x": _A_in["x"],
        "A_wqkv": _A_in["wqkv"],
        "A_wo": _A_in["wo"],
        "B_x": _B_in["x"],
        "B_w_gate": _B_in["w_gate"],
        "B_w_up": _B_in["w_up"],
        "B_w_down": _B_in["w_down"],
    }

def reference(A_x, A_wqkv, A_wo, B_x, B_w_gate, B_w_up, B_w_down):
    def _A_ref(x, wqkv, wo):
        B, S, D = x.shape
        H = 32; Dh = D // H; W = 256
        qkv = (lambda x, *d: x.permute(*d))((x @ wqkv).reshape(B, S, 3, H, Dh), 2, 0, 3, 1, 4)
        q, k, v = qkv[0], qkv[1], qkv[2]
        scores = torch.einsum("bhqd,bhkd->bhqk", q, k) * (Dh ** -0.5)
        idx = torch.arange(S)
        mask = (idx[:, None] - idx[None, :] >= 0) & (idx[:, None] - idx[None, :] < W)
        scores = torch.where(mask[None, None], scores, -1e9)
        p = _softmax(scores, axis=-1)
        o = torch.einsum("bhqk,bhkd->bhqd", p, v)
        return (lambda x, *d: x.permute(*d))(o, 0, 2, 1, 3).reshape(B, S, D) @ wo

    def _B_ref(x, w_gate, w_up, w_down):
        return (_gelu(x @ w_gate) * (x @ w_up)) @ w_down

    x = A_x
    h = x + _A_ref(_layernorm(x, axis=-1), A_wqkv, A_wo)
    h2 = h + _B_ref(_layernorm(h, axis=-1), B_w_gate, B_w_up, B_w_down)
    return h2
```

```python
import re

_REG = re.compile(r'^(-|\|)?(abs\()?([vas])(\d+|\[(\d+):(\d+)\])\)?\|?$')
TRANS = ('v_exp_f32', 'v_log_f32', 'v_rcp_f32', 'v_rsq_f32', 'v_sqrt_f32', 'v_sin_f32', 'v_cos_f32')


def parse_reg(tok):
    tok = tok.strip()
    if tok in ('vcc', 'exec', 'm0', 'vcc_lo', 'vcc_hi', 'exec_lo', 'exec_hi', 'scc'):
        return [(tok.split('_')[0], 0)]
    m = _REG.match(tok)
    if not m:
        return []
    kind = m.group(3)
    if m.group(5) is not None:
        return [(kind, i) for i in range(int(m.group(5)), int(m.group(6)) + 1)]
    return [(kind, int(m.group(4)))]


def split_ops(s):
    out, depth, cur = [], 0, ''
    for ch in s:
        if ch in '[(':
            depth += 1
        elif ch in '])':
            depth -= 1
        if ch == ',' and depth == 0:
            out.append(cur.strip())
            cur = ''
        else:
            cur += ch
    if cur.strip():
        out.append(cur.strip())
    return out


class Ins:
    __slots__ = ('text', 'op', 'cls', 'rd', 'wr', 'pos', 'mfA', 'mfB', 'mfC', 'passes', 'states', 'lds_dma', 'wide_store')


def analyze(text):
    t = text.split(';')[0].strip()
    ins = Ins()
    ins.text = text
    parts = t.split(None, 1)
    op = parts[0]
    ins.op = op
    rest = parts[1] if len(parts) > 1 else ''
    ops = split_ops(rest)
    mods = ''
    if ops:
        sp = ops[-1].split(None, 1)
        if len(sp) > 1:
            ops[-1] = sp[0]
            mods = sp[1]
    ins.rd, ins.wr = set(), set()
    ins.mfA = ins.mfB = ins.mfC = None
    ins.passes = 0
    ins.states = 1
    ins.lds_dma = False
    ins.wide_store = False
    R = lambda i: set(parse_reg(ops[i])) if i < len(ops) else set()
    if op == 's_nop':
        ins.cls = 'nop'
        ins.states = int(ops[0], 0) + 1
    elif op.startswith('v_mfma'):
        ins.cls = 'mfma'
        ins.wr = R(0)
        ins.mfA, ins.mfB, ins.mfC = R(1), R(2), R(3)
        ins.rd = ins.mfA | ins.mfB | ins.mfC
        ins.passes = 8 if '32x32' in op else 4
    elif op.startswith('v_'):
        ins.cls = 'valu'
        if op.startswith('v_permlane') and 'swap' in op:
            ins.wr = R(0) | R(1)
            ins.rd = R(0) | R(1)
        else:
            ins.wr = R(0)
            for i in range(1, len(ops)):
                ins.rd |= R(i)
            if op.startswith(('v_fmac', 'v_dot2c', 'v_pk_fmac', 'v_writelane')):
                ins.rd |= R(0)
            if op.startswith('v_cndmask') and len(ops) == 3:
                ins.rd.add(('vcc', 0))
            if 'dpp' in op or 'row_' in mods or 'quad_perm' in mods:
                ins.rd |= R(0)
    elif op.startswith('buffer_load') or op.startswith('global_load'):
        ins.cls = 'vmem'
        if ' lds' in (' ' + mods) or '_lds_' in op:
            ins.lds_dma = True
            for i in range(len(ops)):
                ins.rd |= R(i)
            ins.rd.add(('m0', 0))
        else:
            ins.wr = R(0)
            for i in range(1, len(ops)):
                ins.rd |= R(i)
    elif op.startswith('buffer_store') or op.startswith('global_store') or op.startswith('buffer_atomic'):
        ins.cls = 'vmem'
        for i in range(len(ops)):
            ins.rd |= R(i)
        if 'x3' in op or 'x4' in op:
            ins.wide_store = True
            ins.mfA = R(0) if op.startswith('buffer') else R(1)
    elif op.startswith('ds_read') or op.startswith('ds_bpermute') or op.startswith('ds_swizzle'):
        ins.cls = 'ds'
        ins.wr = R(0)
        for i in range(1, len(ops)):
            ins.rd |= R(i)
    elif op.startswith('ds_'):
        ins.cls = 'ds'
        for i in range(len(ops)):
            ins.rd |= R(i)
    elif op.startswith('s_'):
        ins.cls = 'salu'
        if op.startswith(('s_cmp', 's_waitcnt', 's_barrier', 's_branch', 's_cbranch', 's_endpgm', 's_setprio', 's_sleep', 's_bitcmp')):
            for i in range(len(ops)):
                ins.rd |= R(i)
        else:
            ins.wr = R(0)
            for i in range(1, len(ops)):
                ins.rd |= R(i)
            if 'saveexec' in op:
                ins.wr.add(('exec', 0))
    else:
        raise ValueError('unknown instr ' + text)
    return ins


def is_vreg(r):
    return r[0] in ('v', 'a')


def is_sreg(r):
    return r[0] in ('s', 'vcc', 'exec')


class Kern:
    def __init__(self, name):
        self.name = name
        self.lines = []
        self.hist = []
        self.pos = 0
        self.vm = []
        self.lg = []
        self.maxv = -1
        self.maxs = -1
        self.maxa = -1
        self.nlabel = 0
        self.ninstr = 0
        self.seen_vm = set()
        self.seen_lg = set()

    def _need(self, c):
        need = 0
        for p in reversed(self.hist):
            dist = self.pos - (p.pos + p.states)
            if dist >= 20:
                break
            req = 0
            if p.cls == 'valu':
                wv = {r for r in p.wr if is_vreg(r)}
                ws = {r for r in p.wr if is_sreg(r)}
                if c.cls == 'mfma' and wv & c.rd:
                    req = max(req, 2)
                if c.cls == 'valu':
                    if ws & c.rd:
                        req = max(req, 4 if c.op.startswith(('v_readlane', 'v_writelane')) else 2)
                    if wv & c.rd:
                        if c.op.startswith(('v_readfirstlane', 'v_readlane')):
                            req = max(req, 1)
                        if c.op.startswith('v_permlane') or 'dpp' in c.text or 'row_' in c.text or 'quad_perm' in c.text:
                            req = max(req, 2)
                        if p.op.startswith(TRANS) and not c.op.startswith(TRANS):
                            req = max(req, 1)
                        if p.op.startswith(TRANS):
                            req = max(req, 1)
                    if p.op.startswith('v_dot'):
                        if wv & (c.rd | c.wr):
                            same = (c.op == p.op)
                            if same:
                                ops = split_ops(c.text.split(';')[0].split(None, 1)[1])
                                ab = set(parse_reg(ops[1])) | set(parse_reg(ops[2].split()[0]))
                                if wv & ab:
                                    req = max(req, 3)
                            else:
                                req = max(req, 3)
                if p.op.startswith('v_dot') and c.cls in ('mfma', 'vmem', 'ds') and wv & (c.rd | c.wr):
                    req = max(req, 3)
                if p.op.startswith(TRANS) and c.cls in ('vmem', 'ds') and wv & c.rd:
                    req = max(req, 1)
                if c.cls == 'vmem' and ws & c.rd:
                    req = max(req, 5)
                if c.cls == 'salu' and ws & c.rd:
                    req = max(req, 1)
                if ('exec', 0) in p.wr and c.cls in ('mfma', 'valu'):
                    req = max(req, 5)
            elif p.cls == 'mfma':
                big = p.passes == 8
                if c.cls == 'mfma':
                    if p.wr & (c.mfA | c.mfB):
                        req = max(req, 12 if big else 8)
                    if p.wr & c.mfC:
                        if not (p.wr == c.mfC and p.passes == c.passes):
                            req = max(req, 10 if big else 6)
                    elif p.wr & c.wr:
                        req = max(req, 12 if big else 8)
                elif c.cls in ('valu', 'vmem', 'ds'):
                    if p.wr & (c.rd | c.wr):
                        req = max(req, 12 if big else 8)
                    if c.cls == 'valu' and p.mfC & c.wr:
                        req = max(req, 7 if big else 3)
                    if c.cls in ('vmem', 'ds') and p.mfC & c.wr:
                        req = max(req, 7 if big else 3)
            elif p.cls == 'salu':
                if ('m0', 0) in p.wr and c.cls == 'vmem' and c.lds_dma:
                    req = max(req, 1)
            elif p.cls == 'vmem':
                if p.wide_store and p.mfA & c.wr:
                    req = max(req, 2)
            need = max(need, req - dist)
        return need

    def _track(self, ins):
        for r in ins.rd | ins.wr:
            if r[0] == 'v':
                self.maxv = max(self.maxv, r[1])
            elif r[0] == 's':
                self.maxs = max(self.maxs, r[1])
            elif r[0] == 'a':
                self.maxa = max(self.maxa, r[1])

    def _push(self, ins):
        ins.pos = self.pos
        self.pos += ins.states
        self.hist.append(ins)
        if len(self.hist) > 40:
            self.hist.pop(0)
        self.lines.append('    ' + ins.text)
        self.ninstr += 1
        self._track(ins)

    def nop(self, n):
        while n > 0:
            k = min(n, 16)
            self._push(analyze(f's_nop {k-1}'))
            n -= k

    def e(self, text):
        for line in text.strip().split('\n'):
            line = line.strip()
            if not line or line.startswith(';'):
                if line:
                    self.lines.append('    ' + line)
                continue
            ins = analyze(line)
            n = self._need(ins)
            if n > 0:
                self.nop(n)
            self._push(ins)

    def comment(self, s):
        self.lines.append('    ; ' + s)

    def fence(self):
        worst = 0
        for p in reversed(self.hist):
            dist = self.pos - (p.pos + p.states)
            if dist >= 12:
                break
            req = {'mfma': 12 if p.passes == 8 else 8, 'valu': 5, 'salu': 1, 'vmem': 2}.get(p.cls, 0)
            worst = max(worst, req - dist)
        if worst > 0:
            self.nop(worst)

    def label(self, name, fence=True):
        if fence:
            self.fence()
        self.lines.append(f'{name}:')

    def skip_end(self, name, start_pos):
        for p in self.hist:
            if p.pos >= start_pos:
                p.pos = start_pos - p.states
        self.pos = start_pos
        self.lines.append(f'{name}:')

    def newlabel(self, base='L'):
        self.nlabel += 1
        return f'{self.name}_{base}{self.nlabel}'

    def vmem(self, text, tag=None):
        self.e(text)
        self.vm.append(tag)
        self.seen_vm.add(tag)
        assert len(self.vm) <= 63, 'too many outstanding vmem'

    def wait_vm(self, tags):
        if not isinstance(tags, (list, set)):
            tags = [tags]
        for t in tags:
            assert t in self.seen_vm, ('vmem tag never issued', t)
        last = -1
        for i, t in enumerate(self.vm):
            if t in tags:
                last = i
        if last < 0:
            return
        n = len(self.vm) - 1 - last
        self.e(f's_waitcnt vmcnt({n})')
        self.vm = self.vm[last + 1:]

    def wait_vm_all(self):
        if self.vm:
            self.e('s_waitcnt vmcnt(0)')
        self.vm = []

    def lds(self, text, tag=None):
        self.e(text)
        self.lg.append(tag)
        self.seen_lg.add(tag)

    def wait_lg(self, tags):
        if not isinstance(tags, (list, set)):
            tags = [tags]
        for t in tags:
            assert t in self.seen_lg, ('lds tag never issued', t)
        last = -1
        for i, t in enumerate(self.lg):
            if t in tags:
                last = i
        if last < 0:
            return
        n = len(self.lg) - 1 - last
        n2 = min(n, 15)
        self.e(f's_waitcnt lgkmcnt({n2})')
        self.lg = self.lg[len(self.lg) - n2:] if n2 else []

    def wait_lg_all(self):
        self.e('s_waitcnt lgkmcnt(0)')
        self.lg = []

    def srd(self, d, lo, off, size):
        if off:
            self.e(f's_add_u32 s{d}, s{lo}, {off:#x}')
            self.e(f's_addc_u32 s{d+1}, s{lo+1}, 0')
            self.e(f's_and_b32 s{d+1}, s{d+1}, 0xffff')
        else:
            self.e(f's_mov_b32 s{d}, s{lo}')
            self.e(f's_and_b32 s{d+1}, s{lo+1}, 0xffff')
        self.e(f's_mov_b32 s{d+2}, {size:#x}')
        self.e(f's_mov_b32 s{d+3}, 0x20000')

    def text(self):
        hdr = [f'.globl {self.name}', '.p2align 8', f'.type {self.name},@function', f'{self.name}:']
        return '\n'.join(hdr + self.lines) + '\n'

    def descriptor(self, min_vgpr=0):
        nv = max(self.maxv + 1, min_vgpr)
        acc = (nv + 3) // 4 * 4
        tot = acc + self.maxa + 1 if self.maxa >= 0 else nv
        ns = max(self.maxs + 1, 16)
        return (f'.p2align 6\n.amdhsa_kernel {self.name}\n'
                f'  .amdhsa_next_free_vgpr {tot}\n'
                f'  .amdhsa_next_free_sgpr {ns}\n'
                f'  .amdhsa_accum_offset {acc}\n'
                f'  .amdhsa_group_segment_fixed_size 0\n'
                f'  .amdhsa_kernarg_size 80\n'
                f'  .amdhsa_user_sgpr_count 2\n'
                f'  .amdhsa_user_sgpr_kernarg_segment_ptr 1\n'
                f'  .amdhsa_system_sgpr_workgroup_id_x 1\n'
                f'.end_amdhsa_kernel\n')


class VAlloc:
    def __init__(self, start=1):
        self.n = start

    def __call__(self, cnt=1, align=1):
        if cnt >= 2 and align == 1:
            align = 2 if cnt < 4 else 4
        self.n = (self.n + align - 1) // align * align
        r = self.n
        self.n += cnt
        return r


def vr(b, n):
    return f'v[{b}:{b+n-1}]' if n > 1 else f'v{b}'


def gemm_loop(k, nsteps, reads, mfmas, extras=None, sync=None, fillers=None, sync_after=1, fill_per_gap=1, per_step=None):
    fillers = fillers if fillers is not None else []
    if sync and sync(0):
        sync(0)(k)
    for ins, tag in reads(0):
        k.lds(ins, tag)
    for s in range(nsteps):
        if per_step:
            per_step(s)
        M = mfmas(s)
        R = reads(s + 1) if s + 1 < nsteps else []
        X = list(extras(s)) if extras else []
        sy = sync(s + 1) if (sync and s + 1 < nsteps) else None
        n = len(M)
        first = min(sync_after, n) if sy else 1
        gaps = list(range(first - 1, n))
        if not gaps:
            gaps = [n - 1]
        rshare = {g: [] for g in range(n)}
        for j, r in enumerate(R):
            rshare[gaps[min(len(gaps) - 1, j * len(gaps) // max(1, len(R)))]].append(r)
        xshare = {g: [] for g in range(n)}
        for j, x in enumerate(X):
            xshare[n - 1 if len(X) == 1 else min(n - 1, j * n // max(1, len(X)))].append(x)
        for i, (ins, ltags, vtags) in enumerate(M):
            if vtags:
                k.wait_vm(vtags)
            k.wait_lg(ltags)
            k.e(ins)
            if sy and i == first - 1:
                sy(k)
            for rins, tag in rshare[i]:
                k.lds(rins, tag)
            for xins, xt in xshare[i]:
                k.wait_lg(xt)
                if callable(xins):
                    xins(k)
                else:
                    k.e(xins)
            for _ in range(fill_per_gap):
                if fillers:
                    fillers.pop(0)(k)
    while fillers:
        fillers.pop(0)(k)
```

```python
import math
import struct
import sys
from asmlib import Kern, VAlloc, vr, gemm_loop

T, D, H, DH, F = 2048, 640, 32, 20, 1728
SEC = 0x280000
WS_Q, WS_K, WS_V, WS_O, WS_H = 0, SEC, 2 * SEC, 3 * SEC, 4 * SEC
WS_S = 5 * SEC
WS_S_SIZE = T * 8 * 8
WS_G = 5 * SEC + 0x80000
WS_G_SIZE = T * F * 2
EPS = 1e-5


def f32(x):
    return '0x%08x' % struct.unpack('<I', struct.pack('<f', x))[0]


def common_prologue(k, nwg):
    k.e(f's_cmp_ge_u32 s2, {nwg}')
    k.e(f's_cbranch_scc1 {k.name}_end')


def end(k):
    k.label(f'{k.name}_end')
    k.e('s_endpgm')


def gen_qkv(SLOTS=4):
    k = Kern('qkv_kernel')
    NC = 10
    SLOT = 32768
    EPI = SLOTS * SLOT
    lds_bytes = EPI + 2048
    va = VAlloc(1)
    vL = va()
    vA = [va(), va()]
    vB = va()
    nsets = (SLOTS * SLOT + 65535) // 65536
    vRA = [[va() for _ in range(4)] for _ in range(nsets)]
    vRB = [[va() for _ in range(4)] for _ in range(nsets)]
    vOnes = va()
    vSq = [va(), va()]
    vSm = [va(), va()]
    vCs = [va(), va()]
    vT = [va() for _ in range(8)]
    vAd = [va() for _ in range(16)]
    aF = [va(4), va(4)]
    bF = [[va(4) for _ in range(4)] for _ in range(2)]
    acc = [va(16) for _ in range(4)]
    ep = va(32)

    common_prologue(k, 240)
    k.e('s_load_dwordx4 s[4:7], s[0:1], 0')
    k.e('s_load_dwordx2 s[8:9], s[0:1], 72')
    k.e(f'v_lshrrev_b32 v{vT[0]}, 6, v0')
    k.e(f'v_and_b32 v{vL}, 63, v0')
    k.e(f'v_readfirstlane_b32 s24, v{vT[0]}')
    k.e('s_and_b32 s25, s2, 7')
    k.e('s_lshr_b32 s26, s2, 3')
    k.e('s_lshl_b32 s25, s25, 1')
    k.e('s_cmp_ge_u32 s26, 15')
    k.e('s_cselect_b32 s31, 1, 0')
    k.e('s_cselect_b32 s33, 15, 0')
    k.e('s_add_u32 s25, s25, s31')
    k.e('s_sub_u32 s26, s26, s33')
    k.e('s_mul_i32 s27, s31, 5')
    k.e('s_add_u32 s27, s27, s26')
    k.e('s_lshr_b32 s33, s25, 1')
    k.e('s_mul_i32 s33, s33, 3')
    k.e('s_add_u32 s27, s27, s33')
    k.e('s_mul_i32 s33, s27, 205')
    k.e('s_lshr_b32 s33, s33, 11')
    k.e('s_mul_i32 s33, s33, 10')
    k.e('s_sub_u32 s30, s27, s33')
    for v in range(41):
        assert (v * 205) >> 11 == v // 10
    k.e('s_lshl_b32 s28, s25, 7')
    k.e('s_lshl_b32 s33, s24, 5')
    k.e('s_add_u32 s28, s28, s33')
    k.e('s_mul_i32 s28, s28, 1280')
    k.e('s_mul_i32 s29, s24, 61440')
    k.e('s_lshl_b32 s33, s26, 8')
    k.e('s_add_u32 s29, s29, s33')
    k.e('s_lshl_b32 s32, s24, 12')
    t0, t1, t2, t3 = vT[0], vT[1], vT[2], vT[3]
    k.e(f'v_lshrrev_b32 v{t0}, 3, v{vL}')
    k.e(f'v_lshrrev_b32 v{t1}, 4, v{vL}')
    k.e(f'v_and_b32 v{t2}, 7, v{vL}')
    k.e(f'v_mul_u32_u24 v{t0}, 1280, v{t0}')
    k.e(f'v_xor_b32 v{t3}, v{t2}, v{t1}')
    k.e(f'v_lshl_add_u32 v{vA[0]}, v{t3}, 4, v{t0}')
    k.e(f'v_xor_b32 v{t3}, 4, v{t3}')
    k.e(f'v_lshl_add_u32 v{vA[1]}, v{t3}, 4, v{t0}')
    k.e(f'v_and_b32 v{t2}, 15, v{vL}')
    k.e(f'v_lshlrev_b32 v{t3}, 2, v{t1}')
    k.e(f'v_xor_b32 v{t3}, v{t2}, v{t3}')
    k.e(f'v_mul_u32_u24 v{t0}, 3840, v{t1}')
    k.e(f'v_lshl_add_u32 v{vB}, v{t3}, 4, v{t0}')
    k.e('s_waitcnt lgkmcnt(0)')
    k.srd(12, 4, 0, SEC)
    k.srd(16, 6, 0, D * 3 * D * 2)

    def issue_chunk(c):
        slot = c % SLOTS
        fs = []

        def f0(k):
            k.e('s_lshl_b32 s34, s30, 7')
            k.e('s_add_u32 s34, s34, s28')
            k.e('s_mul_i32 s35, s30, 245760')
            k.e('s_add_u32 s35, s35, s29')
            k.e('s_add_u32 s30, s30, 1')
            k.e('s_cmp_eq_u32 s30, 10')
            k.e('s_cselect_b32 s30, 0, s30')
        fs.append(f0)
        for i in range(4):
            def fa(k, i=i):
                k.e(f's_add_u32 m0, s32, {slot*SLOT + i*1024}')
                k.e(f's_add_u32 s33, s34, {i*10240}')
                k.vmem(f'buffer_load_dwordx4 v{vA[i&1]}, s[12:15], s33 offen lds', ('c', c))

            def fb(k, i=i):
                k.e(f's_add_u32 m0, s32, {slot*SLOT + 16384 + i*1024}')
                k.e(f's_add_u32 s33, s35, {i*15360}')
                k.vmem(f'buffer_load_dwordx4 v{vB}, s[16:19], s33 offen lds', ('c', c))
            fs.append(fa)
            fs.append(fb)
        return fs

    for c in range(SLOTS):
        for f in issue_chunk(c):
            f(k)

    k.e('s_mul_i32 s36, s26, 205')
    k.e('s_lshr_b32 s36, s36, 10')
    k.e('s_mul_i32 s37, s36, 5')
    k.e('s_sub_u32 s37, s26, s37')
    k.e(f's_mul_i32 s33, s36, {SEC}')
    k.e('s_add_u32 s20, s8, s33')
    k.e('s_addc_u32 s21, s9, 0')
    k.e('s_and_b32 s21, s21, 0xffff')
    k.e(f's_mov_b32 s22, {SEC}')
    k.e('s_mov_b32 s23, 0x20000')
    k.e('s_lshl_b32 s38, s25, 2')
    k.e('s_add_u32 s38, s38, s24')
    k.e('s_mul_i32 s38, s38, 1280')

    r31, hh = vT[4], vT[5]
    k.e(f'v_and_b32 v{r31}, 31, v{vL}')
    k.e(f'v_lshrrev_b32 v{hh}, 5, v{vL}')
    k.e(f'v_bfe_u32 v{t0}, v{vL}, 1, 3')
    k.e(f'v_xor_b32 v{t0}, v{t0}, v{hh}')
    k.e(f'v_lshlrev_b32 v{t0}, 4, v{t0}')
    k.e(f'v_lshl_add_u32 v{t0}, v{r31}, 7, v{t0}')
    k.e(f'v_add_u32 v{t0}, s32, v{t0}')
    for ks in range(4):
        k.e(f'v_xor_b32 v{vRA[0][ks]}, {ks*32}, v{t0}')
    k.e(f'v_bfe_u32 v{t0}, v{vL}, 2, 2')
    k.e(f'v_lshl_add_u32 v{t1}, v{hh}, 3, v{t0}')
    k.e(f'v_lshlrev_b32 v{t1}, 8, v{t1}')
    k.e(f'v_bfe_u32 v{t2}, v{vL}, 4, 1')
    k.e(f'v_lshl_add_u32 v{t1}, v{t2}, 5, v{t1}')
    k.e(f'v_and_b32 v{t2}, 3, v{vL}')
    k.e(f'v_lshl_add_u32 v{t1}, v{t2}, 3, v{t1}')
    k.e(f'v_add_u32 v{t1}, 16384, v{t1}')
    for j in range(4):
        k.e(f's_add_u32 s33, s24, {j}')
        k.e('s_and_b32 s33, s33, 3')
        k.e(f'v_xor_b32 v{t2}, s33, v{t0}')
        k.e(f'v_lshl_add_u32 v{vRB[0][j]}, v{t2}, 6, v{t1}')
    for st in range(1, nsets):
        for j in range(4):
            k.e(f'v_add_u32 v{vRA[st][j]}, {st*65536}, v{vRA[0][j]}')
            k.e(f'v_add_u32 v{vRB[st][j]}, {st*65536}, v{vRB[0][j]}')
    k.e(f'v_mov_b32 v{vOnes}, 0x3f803f80')
    for r in vSq + vSm + vCs:
        k.e(f'v_mov_b32 v{r}, 0')

    for n4 in range(160):
        assert (n4 * 205) >> 10 == n4 // 5
    for n in range(640):
        assert (n * 3277) >> 16 == n // 20

    def main(vpath):
        fillers = []

        def reads(s):
            c, ks = divmod(s, 4)
            off = (c % SLOTS) * SLOT
            st, o = divmod(off, 65536)
            b = s & 1
            L = [(f'ds_read_b128 {vr(aF[b],4)}, v{vRA[st][ks]} offset:{o}', ('a', s))]
            for j in range(4):
                for j2 in range(2):
                    L.append((f'ds_read_b64_tr_b16 {vr(bF[b][j]+2*j2,2)}, v{vRB[st][j]} offset:{o + ks*4096 + j2*1024}', ('b', s, j)))
            return L

        def mfmas(s):
            b = s & 1
            L = []
            for j in range(4):
                cin = vr(acc[j], 16) if s else '0'
                x, w = vr(aF[b], 4), vr(bF[b][j], 4)
                o0, o1 = (x, w) if vpath else (w, x)
                L.append((f'v_mfma_f32_32x32x16_bf16 {vr(acc[j],16)}, {o0}, {o1}, {cin}', [('a', s), ('b', s, j)], []))
            return L

        def extras(s):
            b = s & 1
            L = []
            for r in range(4):
                L.append((f'v_dot2_f32_bf16 v{vSq[r&1]}, v{aF[b]+r}, v{aF[b]+r}, v{vSq[r&1]}', [('a', s)]))
                L.append((f'v_dot2_f32_bf16 v{vSm[r&1]}, v{aF[b]+r}, v{vOnes}, v{vSm[r&1]}', [('a', s)]))
                L.append((f'v_dot2_f32_bf16 v{vCs[r&1]}, v{bF[b][0]+r}, v{vOnes}, v{vCs[r&1]}', [('b', s, 0)]))
            return L

        def sync(s):
            if s % 4:
                return None
            c = s // 4

            def f(k):
                k.wait_vm(('c', c))
                k.e('s_barrier')
                nxt = c - 2 + SLOTS
                if c >= 2 and nxt < NC:
                    fillers.extend(issue_chunk(nxt))
            return f
        gemm_loop(k, NC * 4, reads, mfmas, extras, sync, fillers)

    def stats_common():
        k.e(f'v_add_f32 v{vSq[0]}, v{vSq[0]}, v{vSq[1]}')
        k.e(f'v_add_f32 v{vSm[0]}, v{vSm[0]}, v{vSm[1]}')
        k.e(f'v_add_f32 v{vCs[0]}, v{vCs[0]}, v{vCs[1]}')
        k.e(f'v_mov_b32 v{vSq[1]}, v{vSq[0]}')
        k.e(f'v_mov_b32 v{vSm[1]}, v{vSm[0]}')
        k.e(f'v_mov_b32 v{vCs[1]}, v{vCs[0]}')
        k.e(f'v_permlane32_swap_b32 v{vSq[0]}, v{vSq[1]}')
        k.e(f'v_permlane32_swap_b32 v{vSm[0]}, v{vSm[1]}')
        k.e(f'v_permlane32_swap_b32 v{vCs[0]}, v{vCs[1]}')
        k.e(f'v_add_f32 v{vSq[0]}, v{vSq[0]}, v{vSq[1]}')
        k.e(f'v_add_f32 v{vSm[0]}, v{vSm[0]}, v{vSm[1]}')
        k.e(f'v_add_f32 v{vCs[0]}, v{vCs[0]}, v{vCs[1]}')
        k.e(f's_lshl_b32 s33, s24, 7')
        k.e(f's_add_u32 s33, s33, {EPI}')
        k.e(f'v_lshl_add_u32 v{t2}, v{r31}, 2, s33')
        k.lds(f'ds_write_b32 v{t2}, v{vCs[0]}', 'w')
        k.e(f'v_mul_f32 v{t0}, {f32(1.0/D)}, v{vSm[0]}')
        k.e(f'v_mul_f32 v{t1}, {f32(1.0/D)}, v{vSq[0]}')
        k.e(f'v_fma_f32 v{t1}, -v{t0}, v{t0}, v{t1}')
        k.e(f'v_max_f32 v{t1}, 0, v{t1}')
        k.e(f'v_add_f32 v{t1}, {f32(EPS)}, v{t1}')
        k.e(f'v_rsq_f32 v{t1}, v{t1}')

    lV = k.newlabel('vpath')
    vm_snapshot = list(k.vm)
    k.e('s_cmp_ge_u32 s26, 10')
    k.e(f's_cbranch_scc1 {lV}')

    for j in range(4):
        k.e(f's_add_u32 s33, s24, {j}')
        k.e('s_and_b32 s33, s33, 3')
        k.e('s_lshl_b32 s33, s33, 3')
        k.e('s_lshl_b32 s34, s37, 5')
        k.e('s_add_u32 s39, s33, s34')
        for jq in range(4):
            a = vAd[j * 4 + jq]
            k.e(f'v_add_u32 v{t0}, s39, v{hh}')
            if jq:
                k.e(f'v_add_u32 v{t0}, {2*jq}, v{t0}')
            k.e(f'v_mul_u32_u24 v{t1}, 205, v{t0}')
            k.e(f'v_lshrrev_b32 v{t1}, 10, v{t1}')
            k.e(f'v_mul_u32_u24 v{t2}, 5, v{t1}')
            k.e(f'v_sub_u32 v{t2}, v{t0}, v{t2}')
            k.e(f'v_lshrrev_b32 v{t3}, 1, v{t2}')
            k.e(f'v_lshlrev_b32 v{t3}, 9, v{t3}')
            k.e(f'v_and_b32 v{t0}, 1, v{t2}')
            k.e(f'v_lshl_add_u32 v{t3}, v{t0}, 3, v{t3}')
            k.e(f'v_cmp_eq_u32 vcc, 4, v{t2}')
            k.e(f'v_cndmask_b32 v{t0}, 4, 3, vcc')
            k.e(f'v_lshlrev_b32 v{t0}, v{t0}, v{r31}')
            k.e(f'v_add_u32 v{t3}, v{t3}, v{t0}')
            k.e(f's_mov_b32 s33, {64*1280}')
            k.e(f'v_mad_u32_u24 v{a}, v{t1}, s33, v{t3}')
    main(False)
    stats_common()
    k.e('s_cmp_eq_u32 s36, 0')
    k.e(f's_cselect_b32 s33, {f32(DH ** -0.5 * math.log2(math.e))}, 1.0')
    k.e(f'v_mul_f32 v{t1}, s33, v{t1}')
    k.wait_lg_all()
    k.e('s_barrier')
    k.e(f'v_lshlrev_b32 v{t2}, 4, v{hh}')
    for j in range(4):
        k.e(f's_add_u32 s33, s24, {j}')
        k.e('s_and_b32 s33, s33, 3')
        k.e('s_lshl_b32 s33, s33, 7')
        k.e(f's_add_u32 s33, s33, {EPI}')
        k.e(f'v_add_u32 v{t3}, s33, v{t2}')
        cb_ = ep + (j & 1) * 16
        for jq in range(4):
            k.lds(f'ds_read_b128 {vr(cb_+4*jq,4)}, v{t3} offset:{jq*32}', ('cs', j, jq))
        for jq in range(4):
            k.wait_lg(('cs', j, jq))
            for i in range(4):
                r = acc[j] + 4 * jq + i
                k.e(f'v_fma_f32 v{r}, -v{t0}, v{cb_+4*jq+i}, v{r}')
            for i in range(4):
                r = acc[j] + 4 * jq + i
                k.e(f'v_mul_f32 v{r}, v{t1}, v{r}')
            r = acc[j] + 4 * jq
            k.e(f'v_cvt_pk_bf16_f32 v{r}, v{r}, v{r+1}')
            k.e(f'v_cvt_pk_bf16_f32 v{r+1}, v{r+2}, v{r+3}')
            k.vmem(f'buffer_store_dwordx2 {vr(r,2)}, v{vAd[j*4+jq]}, s[20:23], s38 offen', 'st')
    k.e('s_endpgm')

    k.label(lV)
    k.vm = list(vm_snapshot)
    k.lg = []
    for j in range(4):
        k.e(f's_add_u32 s33, s24, {j}')
        k.e('s_and_b32 s33, s33, 3')
        k.e('s_lshl_b32 s33, s33, 5')
        k.e('s_lshl_b32 s34, s37, 7')
        k.e('s_add_u32 s39, s33, s34')
        k.e(f'v_add_u32 v{t0}, s39, v{r31}')
        k.e(f'v_mul_u32_u24 v{t1}, 3277, v{t0}')
        k.e(f'v_lshrrev_b32 v{t1}, 16, v{t1}')
        k.e(f'v_mul_u32_u24 v{t2}, 20, v{t1}')
        k.e(f'v_sub_u32 v{t2}, v{t0}, v{t2}')
        k.e(f'v_mul_u32_u24 v{t3}, 320, v{hh}')
        k.e(f'v_lshl_add_u32 v{t3}, v{t2}, 4, v{t3}')
        k.e(f's_mov_b32 s33, {64*1280}')
        k.e(f'v_mad_u32_u24 v{vAd[j]}, v{t1}, s33, v{t3}')
    main(True)
    stats_common()
    k.e('s_lshl_b32 s33, s24, 8')
    k.e(f's_add_u32 s33, s33, {EPI+1024}')
    k.e(f'v_lshl_add_u32 v{t2}, v{r31}, 2, s33')
    k.lds(f'ds_write_b32 v{t2}, v{t0}', 'w')
    k.lds(f'ds_write_b32 v{t2}, v{t1} offset:128', 'w')
    k.wait_lg_all()
    k.e('s_barrier')
    k.e(f'v_lshl_add_u32 v{t2}, v{hh}, 4, s33')
    for jq in range(4):
        k.lds(f'ds_read_b128 {vr(ep+4*jq,4)}, v{t2} offset:{jq*32}', 'st')
        k.lds(f'ds_read_b128 {vr(ep+16+4*jq,4)}, v{t2} offset:{128+jq*32}', 'st')
    csr = [vT[0], vT[1], vT[6], vT[7]]
    for j in range(4):
        k.e(f's_add_u32 s33, s24, {j}')
        k.e('s_and_b32 s33, s33, 3')
        k.e('s_lshl_b32 s33, s33, 7')
        k.e(f's_add_u32 s33, s33, {EPI}')
        k.e(f'v_lshl_add_u32 v{t3}, v{r31}, 2, s33')
        k.lds(f'ds_read_b32 v{csr[j]}, v{t3}', 'st')
    k.wait_lg_all()
    for j in range(4):
        for r in range(16):
            k.e(f'v_fma_f32 v{acc[j]+r}, -v{ep+r}, v{csr[j]}, v{acc[j]+r}')
        for r in range(16):
            k.e(f'v_mul_f32 v{acc[j]+r}, v{ep+16+r}, v{acc[j]+r}')
        for r in range(8):
            k.e(f'v_cvt_pk_bf16_f32 v{acc[j]+r}, v{acc[j]+2*r}, v{acc[j]+2*r+1}')
        k.vmem(f'buffer_store_dwordx4 {vr(acc[j],4)}, v{vAd[j]}, s[20:23], s38 offen', 'st')
        k.vmem(f'buffer_store_dwordx4 {vr(acc[j]+4,4)}, v{vAd[j]}, s[20:23], s38 offen offset:640', 'st')
    end(k)
    return k, (240, 256, lds_bytes)


def gen_attn():
    k = Kern('attn_kernel')
    NB = 9
    BIG = 1e30
    BIGBF = (struct.unpack('<I', struct.pack('<f', -BIG))[0] >> 16)
    va = VAlloc(1)
    vL, r31, hh = va(), va(), va()
    t = [va() for _ in range(6)]
    vK1, vK2, vV = va(), va(), va()
    vO1, vO2 = va(), va()
    vM = va()
    q1, q2 = va(4), va(4)
    k1 = [va(4) for _ in range(NB)]
    k2 = [va(4) for _ in range(NB)]
    vv = [va(8) for _ in range(NB)]
    S = [va(16), va(16)]
    bias = [va(16), va(16)]
    O = va(16)

    common_prologue(k, 512)
    k.e('s_load_dwordx2 s[8:9], s[0:1], 72')
    k.e(f'v_lshrrev_b32 v{t[0]}, 6, v0')
    k.e(f'v_and_b32 v{vL}, 63, v0')
    k.e(f'v_readfirstlane_b32 s24, v{t[0]}')
    k.e('s_and_b32 s25, s2, 7')
    k.e('s_lshr_b32 s26, s2, 3')
    k.e('s_lshr_b32 s27, s26, 1')
    k.e('s_and_b32 s26, s26, 1')
    k.e('s_lshl_b32 s25, s25, 3')
    k.e('s_lshl_b32 s26, s26, 2')
    k.e('s_add_u32 s25, s25, s26')
    k.e('s_add_u32 s25, s25, s24')
    k.e('s_lshl_b32 s28, s27, 6')
    k.e(f'v_and_b32 v{r31}, 31, v{vL}')
    k.e(f'v_lshrrev_b32 v{hh}, 5, v{vL}')
    k.e(f'v_lshlrev_b32 v{vK1}, 4, v{vL}')
    k.e(f'v_lshlrev_b32 v{t[0]}, 3, v{r31}')
    k.e(f'v_add_u32 v{t[0]}, 1024, v{t[0]}')
    k.e(f'v_lshlrev_b32 v{t[1]}, 30, v{hh}')
    k.e(f'v_or_b32 v{vK2}, v{t[0]}, v{t[1]}')
    k.e(f'v_mul_u32_u24 v{t[0]}, 320, v{hh}')
    k.e(f'v_lshl_add_u32 v{vV}, v{r31}, 4, v{t[0]}')
    k.e('s_waitcnt lgkmcnt(0)')
    k.srd(12, 8, WS_Q, SEC)
    k.srd(16, 8, WS_K, SEC)
    k.srd(20, 8, WS_V, SEC)
    k.srd(40, 8, WS_O, SEC)
    k.e('s_add_u32 s29, s28, s25')
    k.e('s_mul_i32 s29, s29, 1280')
    k.vmem(f'buffer_load_dwordx4 {vr(q1,4)}, v{vK1}, s[12:15], s29 offen', 'q')
    k.vmem(f'buffer_load_dwordx2 {vr(q2,2)}, v{vK2}, s[12:15], s29 offen', 'q')
    for b in range(NB):
        k.e(f's_sub_i32 s30, s25, {8-b}')
        k.e(f's_max_i32 s31, s30, 0')
        k.e('s_add_u32 s31, s31, s28')
        k.e(f's_mul_i32 s{48+b}, s31, 1280')
        k.e('s_cmp_lt_i32 s30, 0')
        k.e(f's_cselect_b32 s{60+b}, 0x3f80, 0')
        k.vmem(f'buffer_load_dwordx4 {vr(k1[b],4)}, v{vK1}, s[16:19], s{48+b} offen', ('k', b))
        k.vmem(f'buffer_load_dwordx2 {vr(k2[b],2)}, v{vK2}, s[16:19], s{48+b} offen', ('k', b))
    k.e(f'v_cmp_eq_u32 vcc, 20, v{r31}')
    k.e(f'v_mov_b32 v{t[1]}, 0x3f803f80')
    k.e(f'v_cndmask_b32 v{t[0]}, 0, v{t[1]}, vcc')
    for b in range(NB):
        for r in range(8):
            k.e(f'v_mov_b32 v{vv[b]+r}, v{t[0]}')
    k.e('s_mov_b32 exec_lo, 0x000fffff')
    k.e('s_mov_b32 exec_hi, 0x000fffff')
    for b in range(NB):
        k.vmem(f'buffer_load_dwordx4 {vr(vv[b],4)}, v{vV}, s[20:23], s{48+b} offen', ('v', b))
        k.vmem(f'buffer_load_dwordx4 {vr(vv[b]+4,4)}, v{vV}, s[20:23], s{48+b} offen offset:640', ('v', b))
    k.e('s_mov_b64 exec, -1')
    for b in range(NB):
        k.e(f'v_mov_b32 v{k2[b]+2}, v{t[1]}')
        k.e(f'v_mov_b32 v{k2[b]+3}, s{60+b}')
    k.e(f'v_mov_b32 v{q2+2}, 0')
    k.e(f'v_mov_b32 v{q2+3}, {BIGBF:#x}')
    k.e(f'v_lshlrev_b32 v{t[2]}, 2, v{hh}')
    k.e(f'v_sub_u32 v{t[2]}, v{r31}, v{t[2]}')
    k.e(f'v_mov_b32 v{t[3]}, {f32(-BIG)}')
    for r in range(16):
        c = 8 * (r >> 2) + (r & 3)
        k.e(f'v_cmp_le_i32 vcc, {c}, v{t[2]}')
        k.e(f'v_cndmask_b32 v{bias[1]+r}, v{t[3]}, 0, vcc')
        k.e(f'v_cndmask_b32 v{bias[0]+r}, 0, v{t[3]}, vcc')
    k.e(f'v_bfe_u32 v{t[2]}, v{vL}, 4, 1')
    k.e(f'v_mul_u32_u24 v{t[2]}, 20480, v{t[2]}')
    k.e(f'v_and_b32 v{t[4]}, 15, v{vL}')
    k.e(f'v_lshl_add_u32 v{t[2]}, v{t[4]}, 4, v{t[2]}')
    k.e(f'v_lshl_add_u32 v{vO1}, v{hh}, 8, v{t[2]}')
    k.e(f'v_lshlrev_b32 v{t[4]}, 30, v{hh}')
    k.e(f'v_or_b32 v{vO2}, v{t[2]}, v{t[4]}')
    k.e('s_mul_i32 s32, s25, 40960')
    k.e('s_lshl_b32 s33, s27, 9')
    k.e('s_add_u32 s33, s33, s32')
    k.e('s_and_b32 s34, s27, 15')
    k.e('s_lshl_b32 s34, s34, 8')
    k.e('s_lshr_b32 s35, s27, 4')
    k.e('s_lshl_b32 s35, s35, 3')
    k.e('s_add_u32 s34, s34, s35')
    k.e('s_add_u32 s34, s34, s32')
    k.e('s_add_u32 s34, s34, 16384')

    def smfma(b):
        s = S[b & 1]
        cin = vr(bias[0], 16) if b == 0 else (vr(bias[1], 16) if b == NB - 1 else '0')
        k.e(f'v_mfma_f32_32x32x16_bf16 {vr(s,16)}, {vr(k1[b],4)}, {vr(q1,4)}, {cin}')
        k.e(f'v_mfma_f32_32x32x16_bf16 {vr(s,16)}, {vr(k2[b],4)}, {vr(q2,4)}, {vr(s,16)}')

    k.wait_vm(['q', ('k', 0)])
    smfma(0)
    for b in range(NB):
        if b + 1 < NB:
            k.wait_vm(('k', b + 1))
            smfma(b + 1)
        s = S[b & 1]
        if b == 0:
            k.e(f'v_max3_f32 v{vM}, v{s}, v{s+1}, v{s+2}')
            k.e(f'v_max3_f32 v{t[0]}, v{s+3}, v{s+4}, v{s+5}')
            for r in range(6, 16, 4):
                k.e(f'v_max3_f32 v{vM}, v{vM}, v{s+r}, v{s+r+1}')
                if r + 2 < 16:
                    k.e(f'v_max3_f32 v{t[0]}, v{t[0]}, v{s+r+2}, v{s+r+3}')
        else:
            for r in range(0, 16, 4):
                k.e(f'v_max3_f32 v{vM}, v{vM}, v{s+r}, v{s+r+1}')
                k.e(f'v_max3_f32 v{t[0]}, v{t[0]}, v{s+r+2}, v{s+r+3}')
    k.e(f'v_max_f32 v{vM}, v{vM}, v{t[0]}')
    k.e(f'v_mov_b32 v{t[0]}, v{vM}')
    k.e(f'v_permlane32_swap_b32 v{vM}, v{t[0]}')
    k.e(f'v_max_f32 v{vM}, v{vM}, v{t[0]}')
    k.e(f'v_cvt_pk_bf16_f32 v{t[0]}, -v{vM}, -v{vM}')
    k.e(f'v_and_b32 v{t[1]}, 0xffff0000, v{t[0]}')
    k.e(f'v_sub_f32 v{t[2]}, -v{vM}, v{t[1]}')
    k.e(f'v_cvt_pk_bf16_f32 v{t[0]}, v{t[1]}, v{t[2]}')
    k.e(f'v_cmp_eq_u32 vcc, 0, v{hh}')
    k.e(f'v_cndmask_b32 v{q2+2}, 0, v{t[0]}, vcc')
    smfma(0)
    for b in range(NB):
        if b + 1 < NB:
            smfma(b + 1)
        s = S[b & 1]
        for r in range(16):
            k.e(f'v_exp_f32 v{s+r}, v{s+r}')
        for r in range(8):
            k.e(f'v_cvt_pk_bf16_f32 v{s+r}, v{s+2*r}, v{s+2*r+1}')
        k.wait_vm(('v', b))
        k.e(f'v_mfma_f32_32x32x16_bf16 {vr(O,16)}, {vr(vv[b],4)}, {vr(s,4)}, {vr(O,16) if b else 0}')
        k.e(f'v_mfma_f32_32x32x16_bf16 {vr(O,16)}, {vr(vv[b]+4,4)}, {vr(s+4,4)}, {vr(O,16)}')
    k.e(f'v_mov_b32 v{t[0]}, v{O+8}')
    k.e(f'v_mov_b32 v{t[1]}, v{O+8}')
    k.e(f'v_permlane32_swap_b32 v{t[0]}, v{t[1]}')
    k.e(f'v_rcp_f32 v{t[1]}, v{t[1]}')
    for r in range(12):
        k.e(f'v_mul_f32 v{O+r}, v{t[1]}, v{O+r}')
    for r in range(6):
        k.e(f'v_cvt_pk_bf16_f32 v{O+r}, v{O+2*r}, v{O+2*r+1}')
    k.vmem(f'buffer_store_dwordx4 {vr(O,4)}, v{vO1}, s[40:43], s33 offen', 'st')
    k.vmem(f'buffer_store_dwordx2 {vr(O+4,2)}, v{vO2}, s[40:43], s34 offen', 'st')
    end(k)
    return k, (512, 256, 0)


def gen_n640(which):
    wo = which == 'wo'
    k = Kern('wo_kernel' if wo else 'down_kernel')
    KT = D if wo else F
    NS = KT // 32
    CR = 128 if wo else 192
    NC = KT // CR
    SLOTS = NC if wo else 4
    SLOT = CR * 160
    WR = CR // 4
    NP = WR * 10
    NI = (NP + 63) // 64
    XOFF = SLOTS * SLOT
    lds_bytes = XOFF + 4 * 3072
    ABUF = NS if wo else 18
    va = VAlloc(1)
    vL = va()
    t = [va() for _ in range(8)]
    vD = [va() for _ in range(NI)]
    vAo = va()
    nsets = (SLOTS * SLOT + 65535) // 65536
    vR = [va() for _ in range(nsets)]
    vR2 = [va() for _ in range(nsets)] if wo else None
    vX = [va() for _ in range(3)]
    aF = [va(4) for _ in range(ABUF)]
    bF = [[va(4) for _ in range(5)] for _ in range(2)]
    acc = [va(4) for _ in range(5)]
    hres = [va(2) for _ in range(5)]
    ep = va(12)

    common_prologue(k, 256)
    if wo:
        k.e('s_load_dwordx2 s[4:5], s[0:1], 0')
        k.e('s_load_dwordx2 s[6:7], s[0:1], 16')
    else:
        k.e('s_load_dwordx4 s[4:7], s[0:1], 48')
    k.e('s_load_dwordx2 s[8:9], s[0:1], 72')
    k.e(f'v_lshrrev_b32 v{t[0]}, 6, v0')
    k.e(f'v_and_b32 v{vL}, 63, v0')
    k.e(f'v_readfirstlane_b32 s24, v{t[0]}')
    k.e('s_and_b32 s25, s2, 7')
    k.e('s_lshr_b32 s26, s2, 3')
    k.e('s_lshr_b32 s27, s26, 3')
    k.e('s_and_b32 s26, s26, 7')
    k.e('s_lshl_b32 s25, s25, 2')
    k.e('s_add_u32 s25, s25, s27')
    k.e('s_lshl_b32 s28, s25, 2')
    k.e('s_add_u32 s28, s28, s24')
    k.e(f's_mul_i32 s29, s28, {NS*1024}')
    k.e(f's_mul_i32 s30, s24, {WR*1280}')
    k.e('s_mul_i32 s31, s26, 160')
    k.e('s_add_u32 s30, s30, s31')
    k.e(f's_mul_i32 s32, s24, {WR*160}')
    for i in range(NI):
        if i:
            k.e(f'v_add_u32 v{t[0]}, {64*i}, v{vL}')
            src = t[0]
        else:
            src = vL
        k.e(f'v_mul_u32_u24 v{t[1]}, 6554, v{src}')
        k.e(f'v_lshrrev_b32 v{t[1]}, 16, v{t[1]}')
        k.e(f'v_mul_u32_u24 v{t[2]}, 10, v{t[1]}')
        k.e(f'v_sub_u32 v{t[2]}, v{src}, v{t[2]}')
        k.e(f'v_mul_u32_u24 v{t[1]}, 1280, v{t[1]}')
        k.e(f'v_lshl_add_u32 v{vD[i]}, v{t[2]}, 4, v{t[1]}')
    for idx in range(NI * 64):
        assert (idx * 6554) >> 16 == idx // 10
    k.e(f'v_lshlrev_b32 v{vAo}, 4, v{vL}')
    k.e('s_waitcnt lgkmcnt(0)')
    if wo:
        k.srd(12, 8, WS_O, SEC)
        k.srd(16, 6, 0, D * D * 2)
        k.srd(20, 4, 0, SEC)
        k.srd(40, 8, WS_H, SEC)
        k.srd(44, 8, WS_S, WS_S_SIZE)
    else:
        k.srd(12, 8, WS_G, WS_G_SIZE)
        k.srd(16, 4, 0, F * D * 2)
        k.srd(20, 6, 0, SEC)
        k.srd(40, 8, WS_H, SEC)

    def need_chunk(s):
        if wo:
            mx = 40 * s + 39 if s < 16 else KT - 1
        else:
            mx = 32 * s + 31
        return mx // CR

    def a_load(s):
        def f(k):
            k.e(f's_add_u32 s33, s29, {s*1024}')
            k.vmem(f'buffer_load_dwordx4 {vr(aF[s % ABUF],4)}, v{vAo}, s[12:15], s33 offen', ('a', s))
        return f

    def issue_chunk(c):
        slot = c % SLOTS
        fs = []
        for i in range(NI):
            def fb(k, i=i):
                half = (i + 1) * 64 > NP
                k.e(f's_add_u32 m0, s32, {slot*SLOT + i*1024}')
                k.e(f's_add_u32 s33, s30, {c*CR*1280}')
                if half:
                    k.e('s_mov_b32 exec_hi, 0')
                k.vmem(f'buffer_load_dwordx4 v{vD[i]}, s[16:19], s33 offen lds', ('c', c))
                if half:
                    k.e('s_mov_b32 exec_hi, -1')
            fs.append(fb)
        return fs

    a_next = [0]

    def issue_a_upto(n, lst):
        while a_next[0] < min(n, NS):
            lst.append(a_load(a_next[0]))
            a_next[0] += 1

    pre = []
    npre = SLOTS if wo else 3
    for c in range(npre):
        last_s = max(s for s in range(NS) if need_chunk(s) <= c)
        issue_a_upto(min(last_s + 1, ABUF), pre)
        pre.extend(issue_chunk(c))
    for f in pre:
        f(k)
    k.e(f's_mul_i32 s36, s24, 3072')
    k.e(f's_add_u32 s36, s36, {XOFF}')
    k.e(f'v_and_b32 v{t[4]}, 15, v{vL}')
    k.e(f'v_lshrrev_b32 v{t[5]}, 4, v{vL}')
    k.e(f'v_lshrrev_b32 v{t[0]}, 1, v{t[5]}')
    k.e(f'v_lshlrev_b32 v{t[0]}, 9, v{t[0]}')
    k.e(f'v_lshl_add_u32 v{t[0]}, v{t[4]}, 4, v{t[0]}')
    k.e(f'v_and_b32 v{t[1]}, 1, v{t[5]}')
    k.e(f'v_lshl_add_u32 v{vX[0]}, v{t[1]}, 3, v{t[0]}')
    k.e('s_lshr_b32 s37, s28, 1')
    k.e('s_mul_i32 s37, s37, 40960')
    k.e('s_and_b32 s33, s28, 1')
    k.e('s_lshl_b32 s33, s33, 8')
    k.e('s_add_u32 s37, s37, s33')
    k.e('s_mul_i32 s33, s26, 5120')
    k.e('s_add_u32 s37, s37, s33')
    k.e('s_mul_i32 s38, s28, 20480')
    k.e('s_add_u32 s38, s38, s31')
    if wo:
        for i in range(3):
            k.e(f's_add_u32 m0, s36, {i*1024}')
            if i == 2:
                k.e('s_mov_b32 exec_hi, 0')
            k.vmem(f'buffer_load_dwordx4 v{vD[i]}, s[20:23], s38 offen lds', 'x')
            if i == 2:
                k.e('s_mov_b32 exec_hi, -1')
    k.e(f'v_bfe_u32 v{t[0]}, v{vL}, 2, 2')
    k.e(f'v_and_b32 v{t[1]}, 3, v{vL}')
    k.e(f'v_lshrrev_b32 v{t[2]}, 1, v{t[5]}')
    k.e(f'v_and_b32 v{t[3]}, 1, v{t[5]}')
    k.e(f'v_mul_u32_u24 v{t[2]}, {20 if wo else 16}, v{t[2]}')
    k.e(f'v_lshl_add_u32 v{t[2]}, v{t[3]}, 2, v{t[2]}')
    k.e(f'v_add_u32 v{t[2]}, v{t[2]}, v{t[0]}')
    k.e(f'v_mul_u32_u24 v{t[2]}, 160, v{t[2]}')
    k.e(f'v_lshl_add_u32 v{vR[0]}, v{t[1]}, 3, v{t[2]}')
    if wo:
        k.e(f'v_mul_u32_u24 v{t[2]}, 20, v{t[5]}')
        k.e(f'v_add3_u32 v{t[2]}, v{t[2]}, v{t[0]}, 16')
        k.e(f'v_mul_u32_u24 v{t[2]}, 160, v{t[2]}')
        k.e(f'v_lshl_add_u32 v{vR2[0]}, v{t[1]}, 3, v{t[2]}')
    for st in range(1, nsets):
        k.e(f'v_add_u32 v{vR[st]}, {st*65536}, v{vR[0]}')
        if wo:
            k.e(f'v_add_u32 v{vR2[st]}, {st*65536}, v{vR2[0]}')
    k.e(f'v_mul_u32_u24 v{t[0]}, 160, v{t[4]}')
    k.e(f'v_lshl_add_u32 v{t[0]}, v{t[5]}, 3, v{t[0]}')
    k.e(f'v_add_u32 v{vX[1]}, s36, v{t[0]}')
    k.e(f'v_lshl_add_u32 v{vX[2]}, v{vL}, 4, s36')

    fillers = []

    def reads(s):
        b = s & 1
        L = []
        for j in range(5):
            for j2 in range(2):
                if wo:
                    if s < 16:
                        off, base = (40 * s + 8 * j2) * 160 + 32 * j, vR
                    else:
                        off, base = (80 * (s - 16) + 320 * j2) * 160 + 32 * j, vR2
                else:
                    c, r0 = divmod(32 * s, CR)
                    off, base = (c % SLOTS) * SLOT + (r0 + 8 * j2) * 160 + 32 * j, vR
                st, o = divmod(off, 65536)
                L.append((f'ds_read_b64_tr_b16 {vr(bF[b][j]+2*j2,2)}, v{base[st]} offset:{o}', ('b', s, j)))
        return L

    def mfmas(s):
        b = s & 1
        L = []
        for j in range(5):
            cin = vr(acc[j], 4) if s else '0'
            L.append((f'v_mfma_f32_16x16x32_bf16 {vr(acc[j],4)}, {vr(bF[b][j],4)}, {vr(aF[s % ABUF],4)}, {cin}',
                      [('b', s, j)], [('a', s)] if j == 0 else []))
        return L

    issued = [npre]

    def sync(s):
        c = need_chunk(s)
        if s and need_chunk(s - 1) == c:
            return None

        def f(k):
            k.wait_vm([('c', cc) for cc in range(c + 1)])
            k.e('s_barrier')
            while issued[0] < NC and issued[0] - SLOTS <= c - 2 and issued[0] <= c + 3:
                cc = issued[0]
                fillers.extend(issue_chunk(cc))
                issued[0] += 1
        return f

    if not wo:
        pass
    gemm_loop(k, NS, reads, mfmas, None, sync, fillers, per_step=lambda s: issue_a_upto(s + ABUF, fillers))
    assert a_next[0] == NS and issued[0] == NC

    if wo:
        k.wait_vm('x')
        for j in range(5):
            k.lds(f'ds_read_b64 {vr(hres[j],2)}, v{vX[1]} offset:{32*j}', ('x', j))
        sm, sq = t[0], t[1]
        k.e(f'v_mov_b32 v{t[6]}, 0x3f803f80')
        k.e(f'v_mov_b32 v{sm}, 0')
        k.e(f'v_mov_b32 v{sq}, 0')
        for j in range(5):
            k.wait_lg(('x', j))
            a = acc[j]
            k.e(f'v_lshlrev_b32 v{ep}, 16, v{hres[j]}')
            k.e(f'v_and_b32 v{ep+1}, 0xffff0000, v{hres[j]}')
            k.e(f'v_lshlrev_b32 v{ep+2}, 16, v{hres[j]+1}')
            k.e(f'v_and_b32 v{ep+3}, 0xffff0000, v{hres[j]+1}')
            for r in range(4):
                k.e(f'v_add_f32 v{a+r}, v{a+r}, v{ep+r}')
            k.e(f'v_cvt_pk_bf16_f32 v{a}, v{a}, v{a+1}')
            k.e(f'v_cvt_pk_bf16_f32 v{a+1}, v{a+2}, v{a+3}')
            k.e(f's_add_u32 s33, s37, {1024*j}')
            k.vmem(f'buffer_store_dwordx2 {vr(a,2)}, v{vX[0]}, s[40:43], s33 offen', 'st')
            for r in range(2):
                k.e(f'v_dot2_f32_bf16 v{sm}, v{a+r}, v{t[6]}, v{sm}')
                k.e(f'v_dot2_f32_bf16 v{sq}, v{a+r}, v{a+r}, v{sq}')
        for v_ in (sm, sq):
            k.e(f'v_mov_b32 v{t[2]}, v{v_}')
            k.e(f'v_permlane32_swap_b32 v{v_}, v{t[2]}')
            k.e(f'v_add_f32 v{v_}, v{v_}, v{t[2]}')
            k.e(f'v_mov_b32 v{t[2]}, v{v_}')
            k.e(f'v_permlane16_swap_b32 v{v_}, v{t[2]}')
            k.e(f'v_add_f32 v{v_}, v{v_}, v{t[2]}')
        k.e(f'v_mov_b32 v{ep}, v{sm}')
        k.e(f'v_mov_b32 v{ep+1}, v{sq}')
        k.e(f'v_lshlrev_b32 v{t[2]}, 6, v{t[4]}')
        k.e(f'v_lshlrev_b32 v{t[3]}, 28, v{t[5]}')
        k.e(f'v_or_b32 v{t[2]}, v{t[2]}, v{t[3]}')
        k.e('s_lshl_b32 s33, s28, 10')
        k.e('s_lshl_b32 s34, s26, 3')
        k.e('s_add_u32 s33, s33, s34')
        k.vmem(f'buffer_store_dwordx2 {vr(ep,2)}, v{t[2]}, s[44:47], s33 offen', 'st')
    else:
        for j in range(5):
            k.e(f's_add_u32 s33, s37, {1024*j}')
            k.vmem(f'buffer_load_dwordx2 {vr(hres[j],2)}, v{vX[0]}, s[40:43], s33 offen', ('h', j))
        for j in range(5):
            k.wait_vm(('h', j))
            a = acc[j]
            k.e(f'v_lshlrev_b32 v{ep}, 16, v{hres[j]}')
            k.e(f'v_and_b32 v{ep+1}, 0xffff0000, v{hres[j]}')
            k.e(f'v_lshlrev_b32 v{ep+2}, 16, v{hres[j]+1}')
            k.e(f'v_and_b32 v{ep+3}, 0xffff0000, v{hres[j]+1}')
            for r in range(4):
                k.e(f'v_add_f32 v{a+r}, v{a+r}, v{ep+r}')
            k.e(f'v_cvt_pk_bf16_f32 v{a}, v{a}, v{a+1}')
            k.e(f'v_cvt_pk_bf16_f32 v{a+1}, v{a+2}, v{a+3}')
            k.lds(f'ds_write_b64 v{vX[1]}, {vr(a,2)} offset:{32*j}', 'w')
        k.wait_lg_all()
        for i in range(3):
            k.lds(f'ds_read_b128 {vr(ep+4*i,4)}, v{vX[2]} offset:{1024*i}', ('o', i))
        for i in range(3):
            k.wait_lg(('o', i))
            if i == 2:
                k.e('s_mov_b32 exec_hi, 0')
            k.vmem(f'buffer_store_dwordx4 {vr(ep+4*i,4)}, v{vD[i]}, s[20:23], s38 offen', 'st')
    end(k)
    return k, (256, 256, lds_bytes)


def gen_ffn1():
    k = Kern('ffn1_kernel')
    NS, NC = 40, 10
    UP = 81920
    lds_bytes = 163840
    ABUF = 24
    va = VAlloc(1)
    vL, r31, hh = va(), va(), va()
    t = [va() for _ in range(8)]
    vD, vAo, vOnes, vG = va(), va(), va(), va()
    vR = [[va(), va()] for _ in range(3)]
    vCs = [va(), va()]
    st8 = va(8)
    aF = [va(4) for _ in range(ABUF)]
    bF = [[va(4) for _ in range(4)] for _ in range(2)]
    acc = [va(16) for _ in range(4)]

    common_prologue(k, 216)
    k.e('s_load_dwordx4 s[4:7], s[0:1], 32')
    k.e('s_load_dwordx2 s[8:9], s[0:1], 72')
    k.e(f'v_lshrrev_b32 v{t[0]}, 6, v0')
    k.e(f'v_and_b32 v{vL}, 63, v0')
    k.e(f'v_readfirstlane_b32 s24, v{t[0]}')
    k.e('s_and_b32 s25, s2, 7')
    k.e('s_lshr_b32 s26, s2, 3')
    k.e('s_lshl_b32 s28, s25, 3')
    k.e('s_add_u32 s28, s28, s24')
    k.e('s_mul_i32 s29, s28, 40960')
    k.e(f's_mul_i32 s30, s24, {8*3456}')
    k.e('s_lshl_b32 s31, s26, 7')
    k.e('s_add_u32 s30, s30, s31')
    k.e('s_lshl_b32 s32, s24, 10')
    k.e('s_and_b32 s35, s24, 1')
    k.e('s_lshr_b32 s36, s24, 1')
    k.e(f'v_lshrrev_b32 v{t[0]}, 3, v{vL}')
    k.e(f'v_mul_u32_u24 v{t[0]}, 3456, v{t[0]}')
    k.e(f'v_bfe_u32 v{t[1]}, v{vL}, 4, 1')
    k.e(f'v_lshlrev_b32 v{t[1]}, 2, v{t[1]}')
    k.e(f'v_and_b32 v{t[2]}, 7, v{vL}')
    k.e(f'v_xor_b32 v{t[2]}, v{t[2]}, v{t[1]}')
    k.e(f'v_lshl_add_u32 v{vD}, v{t[2]}, 4, v{t[0]}')
    k.e(f'v_lshlrev_b32 v{vAo}, 4, v{vL}')
    k.e(f'v_and_b32 v{r31}, 31, v{vL}')
    k.e(f'v_lshrrev_b32 v{hh}, 5, v{vL}')
    k.e('s_waitcnt lgkmcnt(0)')
    k.srd(12, 8, WS_H, SEC)
    k.srd(16, 4, 0, D * F * 2)
    k.srd(20, 6, 0, D * F * 2)
    k.srd(40, 8, WS_G, WS_G_SIZE)
    k.srd(44, 8, WS_S, WS_S_SIZE)

    def a_load(s):
        def f(k):
            k.e(f's_add_u32 s33, s29, {s*1024}')
            k.vmem(f'buffer_load_dwordx4 {vr(aF[s % ABUF],4)}, v{vAo}, s[12:15], s33 offen', ('a', s))
        return f

    def issue_chunk(c):
        def fg(k):
            k.e(f's_add_u32 m0, s32, {c*8192}')
            k.e(f's_add_u32 s33, s30, {c*64*3456}')
            k.vmem(f'buffer_load_dwordx4 v{vD}, s[16:19], s33 offen lds', ('c', c))

        def fu(k):
            k.e(f's_add_u32 m0, s32, {UP + c*8192}')
            k.e(f's_add_u32 s33, s30, {c*64*3456}')
            k.vmem(f'buffer_load_dwordx4 v{vD}, s[20:23], s33 offen lds', ('c', c))
        return [fg, fu]

    for c in range(NC):
        for f in issue_chunk(c):
            f(k)
        for s in range(4 * c, 4 * c + 4):
            if s < ABUF:
                a_load(s)(k)
        if c == 1:
            k.e(f'v_lshlrev_b32 v{t[0]}, 6, v{r31}')
            k.e(f'v_lshl_add_u32 v{t[0]}, v{hh}, 5, v{t[0]}')
            k.e('s_lshl_b32 s33, s28, 11')
            k.vmem(f'buffer_load_dwordx4 {vr(st8,4)}, v{t[0]}, s[44:47], s33 offen', 'stat')
            k.vmem(f'buffer_load_dwordx4 {vr(st8+4,4)}, v{t[0]}, s[44:47], s33 offen offset:16', 'stat')
    k.e(f'v_bfe_u32 v{t[0]}, v{vL}, 2, 2')
    k.e(f'v_lshl_add_u32 v{t[1]}, v{hh}, 3, v{t[0]}')
    k.e(f'v_lshlrev_b32 v{t[1]}, 7, v{t[1]}')
    k.e(f'v_bfe_u32 v{t[2]}, v{vL}, 4, 1')
    k.e(f'v_lshl_add_u32 v{t[1]}, v{t[2]}, 5, v{t[1]}')
    k.e(f'v_and_b32 v{t[2]}, 3, v{vL}')
    k.e(f'v_lshl_add_u32 v{t[1]}, v{t[2]}, 3, v{t[1]}')
    k.e(f'v_lshrrev_b32 v{t[0]}, 1, v{t[0]}')
    k.e(f'v_xor_b32 v{t[0]}, s35, v{t[0]}')
    k.e(f'v_lshl_add_u32 v{vR[0][0]}, v{t[0]}, 6, v{t[1]}')
    k.e(f'v_xor_b32 v{vR[0][1]}, 64, v{vR[0][0]}')
    for st in range(1, 3):
        for j in range(2):
            k.e(f'v_add_u32 v{vR[st][j]}, {st*65536}, v{vR[0][j]}')
    k.e(f'v_mov_b32 v{vOnes}, 0x3f803f80')
    k.e(f'v_mov_b32 v{vCs[0]}, 0')
    k.e(f'v_mov_b32 v{vCs[1]}, 0')
    k.e(f'v_bfe_u32 v{t[0]}, v{vL}, 4, 1')
    k.e(f'v_mul_u32_u24 v{t[0]}, {54*1024}, v{t[0]}')
    k.e(f'v_and_b32 v{t[1]}, 15, v{vL}')
    k.e(f'v_lshl_add_u32 v{t[0]}, v{t[1]}, 4, v{t[0]}')
    k.e(f'v_lshl_add_u32 v{vG}, v{hh}, 8, v{t[0]}')
    k.e(f's_mul_i32 s37, s28, {108*1024}')
    k.e('s_lshl_b32 s33, s26, 11')
    k.e('s_add_u32 s37, s37, s33')

    fillers = []

    def reads(s):
        b = s & 1
        L = []
        for j in range(4):
            for j2 in range(2):
                off = (UP if j >= 2 else 0) + s * 2048 + j2 * 512
                st, o = divmod(off, 65536)
                L.append((f'ds_read_b64_tr_b16 {vr(bF[b][j]+2*j2,2)}, v{vR[st][j&1]} offset:{o}', ('b', s, j)))
        return L

    def mfmas(s):
        b = s & 1
        L = []
        for j in range(4):
            cin = vr(acc[j], 16) if s else '0'
            L.append((f'v_mfma_f32_32x32x16_bf16 {vr(acc[j],16)}, {vr(bF[b][j],4)}, {vr(aF[s % ABUF],4)}, {cin}',
                      [('b', s, j)], [('a', s)] if j == 0 else []))
        return L

    def extras(s):
        b = s & 1

        def f(k):
            lab = k.newlabel('cs')
            k.e(f's_cmp_lg_u32 s36, {s & 3}')
            k.e(f's_cbranch_scc1 {lab}')
            p0 = k.pos
            for r in range(4):
                k.e(f'v_dot2_f32_bf16 v{vCs[0]}, v{bF[b][0]+r}, v{vOnes}, v{vCs[0]}')
                k.e(f'v_dot2_f32_bf16 v{vCs[1]}, v{bF[b][2]+r}, v{vOnes}, v{vCs[1]}')
            k.skip_end(lab, p0)
        return [(f, [('b', s, 0), ('b', s, 2)])]

    def sync(s):
        if s % 4:
            return None
        c = s // 4

        def f(k):
            k.wait_vm(('c', c))
            k.e('s_barrier')
        return f

    def per_step(s):
        if s >= 1 and s - 1 + ABUF < NS:
            fillers.append(a_load(s - 1 + ABUF))

    gemm_loop(k, NS, reads, mfmas, extras, sync, fillers, per_step=per_step)

    k.wait_vm('stat')
    k.e(f'v_add_f32 v{st8}, v{st8}, v{st8+2}')
    k.e(f'v_add_f32 v{st8+1}, v{st8+1}, v{st8+3}')
    k.e(f'v_add_f32 v{st8+4}, v{st8+4}, v{st8+6}')
    k.e(f'v_add_f32 v{st8+5}, v{st8+5}, v{st8+7}')
    k.e(f'v_add_f32 v{st8}, v{st8}, v{st8+4}')
    k.e(f'v_add_f32 v{st8+1}, v{st8+1}, v{st8+5}')
    for v_ in (st8, st8 + 1, vCs[0], vCs[1]):
        k.e(f'v_mov_b32 v{t[2]}, v{v_}')
        k.e(f'v_permlane32_swap_b32 v{v_}, v{t[2]}')
        k.e(f'v_add_f32 v{v_}, v{v_}, v{t[2]}')
    k.wait_lg_all()
    k.e('s_barrier')
    k.e('s_lshl_b32 s33, s36, 9')
    k.e('s_lshl_b32 s34, s35, 7')
    k.e('s_add_u32 s33, s33, s34')
    k.e(f'v_lshl_add_u32 v{t[2]}, v{r31}, 2, s33')
    k.lds(f'ds_write_b32 v{t[2]}, v{vCs[0]}', 'w')
    k.lds(f'ds_write_b32 v{t[2]}, v{vCs[1]} offset:256', 'w')
    mean, k0, k1_, irs2 = t[0], t[1], t[3], t[4]
    k.e(f'v_mul_f32 v{mean}, {f32(1.0/D)}, v{st8}')
    k.e(f'v_mul_f32 v{irs2}, {f32(1.0/D)}, v{st8+1}')
    k.e(f'v_fma_f32 v{irs2}, -v{mean}, v{mean}, v{irs2}')
    k.e(f'v_max_f32 v{irs2}, 0, v{irs2}')
    k.e(f'v_add_f32 v{irs2}, {f32(EPS)}, v{irs2}')
    k.e(f'v_rsq_f32 v{k0}, v{irs2}')
    c0 = -2.0 * math.log2(math.e) * math.sqrt(2.0 / math.pi)
    c1 = c0 * 0.044715
    k.e(f'v_mul_f32 v{k1_}, v{k0}, v{k0}')
    k.e(f'v_mul_f32 v{k1_}, v{k1_}, v{k0}')
    k.e(f'v_mul_f32 v{k1_}, {f32(c1)}, v{k1_}')
    k.e(f'v_mul_f32 v{k0}, {f32(c0)}, v{k0}')
    k.wait_lg_all()
    k.e('s_barrier')
    cs = aF[0]
    for j in range(2):
        k.e(f's_xor_b32 s33, s35, {j}')
        k.e('s_lshl_b32 s34, s33, 7')
        k.e(f'v_lshl_add_u32 v{t[2]}, v{hh}, 4, s34')
        k.e('s_lshl_b32 s34, s33, 10')
        k.e('s_add_u32 s34, s34, s37')
        for jq in range(4):
            for gu in range(2):
                for p in range(4):
                    k.lds(f'ds_read_b128 {vr(cs + (gu*4+p)*4, 4)}, v{t[2]} offset:{p*512 + gu*256 + jq*32}', ('cs', gu))
            for gu in range(2):
                k.wait_lg(('cs', gu))
                b0 = cs + gu * 16
                for i in range(4):
                    k.e(f'v_add_f32 v{b0+i}, v{b0+i}, v{b0+4+i}')
                    k.e(f'v_add_f32 v{b0+8+i}, v{b0+8+i}, v{b0+12+i}')
                for i in range(4):
                    k.e(f'v_add_f32 v{b0+i}, v{b0+i}, v{b0+8+i}')
            tmp = cs + 32
            for i in range(4):
                g_, u_ = acc[j] + 4 * jq + i, acc[2 + j] + 4 * jq + i
                k.e(f'v_fma_f32 v{g_}, -v{mean}, v{cs+i}, v{g_}')
                k.e(f'v_fma_f32 v{u_}, -v{mean}, v{cs+16+i}, v{u_}')
            for i in range(4):
                g_ = acc[j] + 4 * jq + i
                k.e(f'v_mul_f32 v{tmp+i}, v{g_}, v{g_}')
            for i in range(4):
                k.e(f'v_fma_f32 v{tmp+i}, v{tmp+i}, v{k1_}, v{k0}')
            for i in range(4):
                g_ = acc[j] + 4 * jq + i
                k.e(f'v_mul_f32 v{tmp+i}, v{tmp+i}, v{g_}')
            for i in range(4):
                k.e(f'v_exp_f32 v{tmp+i}, v{tmp+i}')
            for i in range(4):
                g_, u_ = acc[j] + 4 * jq + i, acc[2 + j] + 4 * jq + i
                k.e(f'v_mul_f32 v{g_}, v{g_}, v{u_}')
            for i in range(4):
                k.e(f'v_fma_f32 v{tmp+i}, v{tmp+i}, v{irs2}, v{irs2}')
            for i in range(4):
                k.e(f'v_rcp_f32 v{tmp+i}, v{tmp+i}')
            for i in range(4):
                g_ = acc[j] + 4 * jq + i
                k.e(f'v_mul_f32 v{g_}, v{g_}, v{tmp+i}')
            g0 = acc[j] + 4 * jq
            o = acc[2 + j] + 2 * jq
            k.e(f'v_cvt_pk_bf16_f32 v{o}, v{g0}, v{g0+1}')
            k.e(f'v_cvt_pk_bf16_f32 v{o+1}, v{g0+2}, v{g0+3}')
            if jq & 1:
                m = jq >> 1
                k.vmem(f'buffer_store_dwordx4 {vr(acc[2+j]+4*m,4)}, v{vG}, s[40:43], s34 offen offset:{512*m}', 'st')
    end(k)
    return k, (216, 512, lds_bytes)


def gemm_loop_ffn(k, nsteps, reads, mfmas, extras, sync, fillers):
    cache = {}

    def sync1(s):
        if s not in cache:
            cache[s] = sync(s)
        return cache[s]
    gemm_loop(k, nsteps, reads, mfmas, extras, sync1, fillers)


HEADER = open('sequential_preLN__sliding_block__geglu_ffn__prompt.s.ref').read().split('; Override')[0]


def build(path):
    ks = [gen_qkv(), gen_attn(), gen_n640('wo'), gen_ffn1(), gen_n640('down')]
    out = [HEADER.rstrip('\n')]
    for k, (g, b, l) in ks:
        out.append(f'; @launch kernel={k.name} grid=({g},1,1) block=({b},1,1) lds={l}')
    out.append('.amdgcn_target "amdgcn-amd-amdhsa--gfx950"')
    out.append('.text')
    for k, _ in ks:
        out.append(k.text())
    out.append('.section .rodata,"a"')
    for k, _ in ks:
        out.append(k.descriptor())
    open(path, 'w').write('\n'.join(out))
    for k, c in ks:
        print(k.name, c, 'vgpr', k.maxv + 1, 'sgpr', k.maxs + 1, 'instr', k.ninstr)


if __name__ == '__main__':
    build(sys.argv[1] if len(sys.argv) > 1 else 'sequential_preLN__sliding_block__geglu_ffn__prompt.s')
```

```python
import re

_REG = re.compile(r'^(-|\|)?(abs\()?([vas])(\d+|\[(\d+):(\d+)\])\)?\|?$')
TRANS = ('v_exp_f32', 'v_log_f32', 'v_rcp_f32', 'v_rsq_f32', 'v_sqrt_f32', 'v_sin_f32', 'v_cos_f32')


def parse_reg(tok):
    tok = tok.strip()
    if tok in ('vcc', 'exec', 'm0', 'vcc_lo', 'vcc_hi', 'exec_lo', 'exec_hi', 'scc'):
        return [(tok.split('_')[0], 0)]
    m = _REG.match(tok)
    if not m:
        return []
    kind = m.group(3)
    if m.group(5) is not None:
        return [(kind, i) for i in range(int(m.group(5)), int(m.group(6)) + 1)]
    return [(kind, int(m.group(4)))]


def split_ops(s):
    out, depth, cur = [], 0, ''
    for ch in s:
        if ch in '[(':
            depth += 1
        elif ch in '])':
            depth -= 1
        if ch == ',' and depth == 0:
            out.append(cur.strip())
            cur = ''
        else:
            cur += ch
    if cur.strip():
        out.append(cur.strip())
    return out


class Ins:
    __slots__ = ('text', 'op', 'cls', 'rd', 'wr', 'pos', 'mfA', 'mfB', 'mfC', 'passes', 'states', 'lds_dma', 'wide_store')


def analyze(text):
    t = text.split(';')[0].strip()
    ins = Ins()
    ins.text = text
    parts = t.split(None, 1)
    op = parts[0]
    ins.op = op
    rest = parts[1] if len(parts) > 1 else ''
    ops = split_ops(rest)
    mods = ''
    if ops:
        sp = ops[-1].split(None, 1)
        if len(sp) > 1:
            ops[-1] = sp[0]
            mods = sp[1]
    ins.rd, ins.wr = set(), set()
    ins.mfA = ins.mfB = ins.mfC = None
    ins.passes = 0
    ins.states = 1
    ins.lds_dma = False
    ins.wide_store = False
    R = lambda i: set(parse_reg(ops[i])) if i < len(ops) else set()
    if op == 's_nop':
        ins.cls = 'nop'
        ins.states = int(ops[0], 0) + 1
    elif op.startswith('v_mfma'):
        ins.cls = 'mfma'
        ins.wr = R(0)
        ins.mfA, ins.mfB, ins.mfC = R(1), R(2), R(3)
        ins.rd = ins.mfA | ins.mfB | ins.mfC
        ins.passes = 8 if '32x32' in op else 4
    elif op.startswith('v_'):
        ins.cls = 'valu'
        if op.startswith('v_permlane') and 'swap' in op:
            ins.wr = R(0) | R(1)
            ins.rd = R(0) | R(1)
        else:
            ins.wr = R(0)
            for i in range(1, len(ops)):
                ins.rd |= R(i)
            if op.startswith(('v_fmac', 'v_dot2c', 'v_pk_fmac', 'v_writelane')):
                ins.rd |= R(0)
            if op.startswith('v_cndmask') and len(ops) == 3:
                ins.rd.add(('vcc', 0))
            if 'dpp' in op or 'row_' in mods or 'quad_perm' in mods:
                ins.rd |= R(0)
    elif op.startswith('buffer_load') or op.startswith('global_load'):
        ins.cls = 'vmem'
        if ' lds' in (' ' + mods) or '_lds_' in op:
            ins.lds_dma = True
            for i in range(len(ops)):
                ins.rd |= R(i)
            ins.rd.add(('m0', 0))
        else:
            ins.wr = R(0)
            for i in range(1, len(ops)):
                ins.rd |= R(i)
    elif op.startswith('buffer_store') or op.startswith('global_store') or op.startswith('buffer_atomic'):
        ins.cls = 'vmem'
        for i in range(len(ops)):
            ins.rd |= R(i)
        if 'x3' in op or 'x4' in op:
            ins.wide_store = True
            ins.mfA = R(0) if op.startswith('buffer') else R(1)
    elif op.startswith('ds_read') or op.startswith('ds_bpermute') or op.startswith('ds_swizzle'):
        ins.cls = 'ds'
        ins.wr = R(0)
        for i in range(1, len(ops)):
            ins.rd |= R(i)
    elif op.startswith('ds_'):
        ins.cls = 'ds'
        for i in range(len(ops)):
            ins.rd |= R(i)
    elif op.startswith('s_'):
        ins.cls = 'salu'
        if op.startswith(('s_cmp', 's_waitcnt', 's_barrier', 's_branch', 's_cbranch', 's_endpgm', 's_setprio', 's_sleep', 's_bitcmp')):
            for i in range(len(ops)):
                ins.rd |= R(i)
        else:
            ins.wr = R(0)
            for i in range(1, len(ops)):
                ins.rd |= R(i)
            if 'saveexec' in op:
                ins.wr.add(('exec', 0))
    else:
        raise ValueError('unknown instr ' + text)
    return ins


def is_vreg(r):
    return r[0] in ('v', 'a')


def is_sreg(r):
    return r[0] in ('s', 'vcc', 'exec')


class Kern:
    def __init__(self, name):
        self.name = name
        self.lines = []
        self.hist = []
        self.pos = 0
        self.vm = []
        self.lg = []
        self.maxv = -1
        self.maxs = -1
        self.maxa = -1
        self.nlabel = 0
        self.ninstr = 0
        self.seen_vm = set()
        self.seen_lg = set()

    def _need(self, c):
        need = 0
        for p in reversed(self.hist):
            dist = self.pos - (p.pos + p.states)
            if dist >= 20:
                break
            req = 0
            if p.cls == 'valu':
                wv = {r for r in p.wr if is_vreg(r)}
                ws = {r for r in p.wr if is_sreg(r)}
                if c.cls == 'mfma' and wv & c.rd:
                    req = max(req, 2)
                if c.cls == 'valu':
                    if ws & c.rd:
                        req = max(req, 4 if c.op.startswith(('v_readlane', 'v_writelane')) else 2)
                    if wv & c.rd:
                        if c.op.startswith(('v_readfirstlane', 'v_readlane')):
                            req = max(req, 1)
                        if c.op.startswith('v_permlane') or 'dpp' in c.text or 'row_' in c.text or 'quad_perm' in c.text:
                            req = max(req, 2)
                        if p.op.startswith(TRANS) and not c.op.startswith(TRANS):
                            req = max(req, 1)
                        if p.op.startswith(TRANS):
                            req = max(req, 1)
                    if p.op.startswith('v_dot'):
                        if wv & (c.rd | c.wr):
                            same = (c.op == p.op)
                            if same:
                                ops = split_ops(c.text.split(';')[0].split(None, 1)[1])
                                ab = set(parse_reg(ops[1])) | set(parse_reg(ops[2].split()[0]))
                                if wv & ab:
                                    req = max(req, 3)
                            else:
                                req = max(req, 3)
                if p.op.startswith('v_dot') and c.cls in ('mfma', 'vmem', 'ds') and wv & (c.rd | c.wr):
                    req = max(req, 3)
                if p.op.startswith(TRANS) and c.cls in ('vmem', 'ds') and wv & c.rd:
                    req = max(req, 1)
                if c.cls == 'vmem' and ws & c.rd:
                    req = max(req, 5)
                if c.cls == 'salu' and ws & c.rd:
                    req = max(req, 1)
                if ('exec', 0) in p.wr and c.cls in ('mfma', 'valu'):
                    req = max(req, 5)
            elif p.cls == 'mfma':
                big = p.passes == 8
                if c.cls == 'mfma':
                    if p.wr & (c.mfA | c.mfB):
                        req = max(req, 12 if big else 8)
                    if p.wr & c.mfC:
                        if not (p.wr == c.mfC and p.passes == c.passes):
                            req = max(req, 10 if big else 6)
                    elif p.wr & c.wr:
                        req = max(req, 12 if big else 8)
                elif c.cls in ('valu', 'vmem', 'ds'):
                    if p.wr & (c.rd | c.wr):
                        req = max(req, 12 if big else 8)
                    if c.cls == 'valu' and p.mfC & c.wr:
                        req = max(req, 7 if big else 3)
                    if c.cls in ('vmem', 'ds') and p.mfC & c.wr:
                        req = max(req, 7 if big else 3)
            elif p.cls == 'salu':
                if ('m0', 0) in p.wr and c.cls == 'vmem' and c.lds_dma:
                    req = max(req, 1)
            elif p.cls == 'vmem':
                if p.wide_store and p.mfA & c.wr:
                    req = max(req, 2)
            need = max(need, req - dist)
        return need

    def _track(self, ins):
        for r in ins.rd | ins.wr:
            if r[0] == 'v':
                self.maxv = max(self.maxv, r[1])
            elif r[0] == 's':
                self.maxs = max(self.maxs, r[1])
            elif r[0] == 'a':
                self.maxa = max(self.maxa, r[1])

    def _push(self, ins):
        ins.pos = self.pos
        self.pos += ins.states
        self.hist.append(ins)
        if len(self.hist) > 40:
            self.hist.pop(0)
        self.lines.append('    ' + ins.text)
        self.ninstr += 1
        self._track(ins)

    def nop(self, n):
        while n > 0:
            k = min(n, 16)
            self._push(analyze(f's_nop {k-1}'))
            n -= k

    def e(self, text):
        for line in text.strip().split('\n'):
            line = line.strip()
            if not line or line.startswith(';'):
                if line:
                    self.lines.append('    ' + line)
                continue
            ins = analyze(line)
            n = self._need(ins)
            if n > 0:
                self.nop(n)
            self._push(ins)

    def comment(self, s):
        self.lines.append('    ; ' + s)

    def fence(self):
        worst = 0
        for p in reversed(self.hist):
            dist = self.pos - (p.pos + p.states)
            if dist >= 12:
                break
            req = {'mfma': 12 if p.passes == 8 else 8, 'valu': 5, 'salu': 1, 'vmem': 2}.get(p.cls, 0)
            worst = max(worst, req - dist)
        if worst > 0:
            self.nop(worst)

    def label(self, name, fence=True):
        if fence:
            self.fence()
        self.lines.append(f'{name}:')

    def skip_end(self, name, start_pos):
        for p in self.hist:
            if p.pos >= start_pos:
                p.pos = start_pos - p.states
        self.pos = start_pos
        self.lines.append(f'{name}:')

    def newlabel(self, base='L'):
        self.nlabel += 1
        return f'{self.name}_{base}{self.nlabel}'

    def vmem(self, text, tag=None):
        self.e(text)
        self.vm.append(tag)
        self.seen_vm.add(tag)
        assert len(self.vm) <= 63, 'too many outstanding vmem'

    def wait_vm(self, tags):
        if not isinstance(tags, (list, set)):
            tags = [tags]
        for t in tags:
            assert t in self.seen_vm, ('vmem tag never issued', t)
        last = -1
        for i, t in enumerate(self.vm):
            if t in tags:
                last = i
        if last < 0:
            return
        n = len(self.vm) - 1 - last
        self.e(f's_waitcnt vmcnt({n})')
        self.vm = self.vm[last + 1:]

    def wait_vm_all(self):
        if self.vm:
            self.e('s_waitcnt vmcnt(0)')
        self.vm = []

    def lds(self, text, tag=None):
        self.e(text)
        self.lg.append(tag)
        self.seen_lg.add(tag)

    def wait_lg(self, tags):
        if not isinstance(tags, (list, set)):
            tags = [tags]
        for t in tags:
            assert t in self.seen_lg, ('lds tag never issued', t)
        last = -1
        for i, t in enumerate(self.lg):
            if t in tags:
                last = i
        if last < 0:
            return
        n = len(self.lg) - 1 - last
        n2 = min(n, 15)
        self.e(f's_waitcnt lgkmcnt({n2})')
        self.lg = self.lg[len(self.lg) - n2:] if n2 else []

    def wait_lg_all(self):
        self.e('s_waitcnt lgkmcnt(0)')
        self.lg = []

    DEBUG = False
    DBG_OFF = 0x4000000

    def stamp(self, i=None):
        if not Kern.DEBUG:
            return
        if i == 0:
            self.nst = 0
            self.e('s_memrealtime s[92:93]')
        elif i == 1:
            self.nst = 1
        i = self.nst
        assert i < 10
        self.nst += 1
        self.e(f's_memtime s[{72+2*i}:{73+2*i}]')
        self.wait_lg_all()

    def dump_stamps(self, n, kidx, wave_sgpr=24, ws_lo=8):
        if not Kern.DEBUG:
            return
        self.stamp()
        self.e('s_waitcnt vmcnt(0)')
        self.vm = []
        n = self.nst
        self.stamp()
        self.e('s_memrealtime s[94:95]')
        self.wait_lg_all()
        self.e('s_mov_b64 exec, 1')
        self.srd(96, ws_lo, Kern.DBG_OFF + kidx * 0x100000, 0x100000)
        for i in range(n + 1):
            self.e(f'v_mov_b32 v{4+i}, s{72+2*i}')
        for i in range(n + 1, 10):
            self.e(f'v_mov_b32 v{4+i}, 0')
        self.e('v_mov_b32 v14, s92')
        self.e('v_mov_b32 v15, s94')
        self.e('s_lshl_b32 s70, s2, 4')
        self.e(f's_add_u32 s70, s70, s{wave_sgpr}')
        self.e('s_lshl_b32 s70, s70, 6')
        self.e('v_mov_b32 v1, s70')
        self.e('buffer_store_dwordx4 v[4:7], v1, s[96:99], 0 offen')
        self.e('buffer_store_dwordx4 v[8:11], v1, s[96:99], 0 offen offset:16')
        self.e('buffer_store_dwordx4 v[12:15], v1, s[96:99], 0 offen offset:32')

    def srd(self, d, lo, off, size):
        if off:
            self.e(f's_add_u32 s{d}, s{lo}, {off:#x}')
            self.e(f's_addc_u32 s{d+1}, s{lo+1}, 0')
            self.e(f's_and_b32 s{d+1}, s{d+1}, 0xffff')
        else:
            self.e(f's_mov_b32 s{d}, s{lo}')
            self.e(f's_and_b32 s{d+1}, s{lo+1}, 0xffff')
        self.e(f's_mov_b32 s{d+2}, {size:#x}')
        self.e(f's_mov_b32 s{d+3}, 0x20000')

    def text(self):
        hdr = [f'.globl {self.name}', '.p2align 8', f'.type {self.name},@function', f'{self.name}:']
        return '\n'.join(hdr + self.lines) + '\n'

    def descriptor(self, min_vgpr=0):
        nv = max(self.maxv + 1, min_vgpr)
        acc = (nv + 3) // 4 * 4
        tot = acc + self.maxa + 1 if self.maxa >= 0 else nv
        ns = max(self.maxs + 1, 16)
        return (f'.p2align 6\n.amdhsa_kernel {self.name}\n'
                f'  .amdhsa_next_free_vgpr {tot}\n'
                f'  .amdhsa_next_free_sgpr {ns}\n'
                f'  .amdhsa_accum_offset {acc}\n'
                f'  .amdhsa_group_segment_fixed_size 0\n'
                f'  .amdhsa_kernarg_size 80\n'
                f'  .amdhsa_user_sgpr_count 2\n'
                f'  .amdhsa_user_sgpr_kernarg_segment_ptr 1\n'
                f'  .amdhsa_system_sgpr_workgroup_id_x 1\n'
                f'.end_amdhsa_kernel\n')


class VAlloc:
    def __init__(self, start=1):
        self.n = start

    def __call__(self, cnt=1, align=1):
        if cnt >= 2 and align == 1:
            align = 2 if cnt < 4 else 4
        self.n = (self.n + align - 1) // align * align
        r = self.n
        self.n += cnt
        return r


def vr(b, n):
    return f'v[{b}:{b+n-1}]' if n > 1 else f'v{b}'


def gemm_loop(k, nsteps, reads, mfmas, extras=None, sync=None, fillers=None, sync_after=1, fill_per_gap=1,
              per_step=None, lookahead=1 << 30, extras_at_end=True, stamp_steps=()):
    fillers = fillers if fillers is not None else []
    k.stamp(1)
    if sync and sync(0):
        sync(0)(k)
    k.stamp(2)
    for ins, tag in reads(0):
        k.lds(ins, tag)
    for s in range(nsteps):
        if per_step:
            per_step(s)
        M = mfmas(s)
        R = reads(s + 1) if s + 1 < nsteps else []
        X = list(extras(s)) if extras else []
        sy = sync(s + 1) if (sync and s + 1 < nsteps) else None
        n = len(M)
        first = min(sync_after, n) if sy else 1
        gaps = list(range(first - 1, n))
        rshare = {g: [] for g in range(n)}
        for j, r in enumerate(R):
            rshare[gaps[min(len(gaps) - 1, j * len(gaps) // max(1, len(R)))]].append(r)
        xshare = {g: [] for g in range(n)}
        for j, x in enumerate(X):
            xshare[n - 1 if extras_at_end else min(n - 1, j * n // max(1, len(X)))].append(x)
        for i, (ins, ltags, vtags) in enumerate(M):
            if vtags:
                k.wait_vm(vtags)
            k.wait_lg(ltags)
            k.e(ins)
            if sy and i == first - 1:
                sy(k)
                if s + 1 in stamp_steps:
                    k.stamp()
            for rins, tag in rshare[i]:
                k.lds(rins, tag)
            for _ in range(fill_per_gap):
                if fillers and fillers[0][0] <= s + lookahead:
                    fillers.pop(0)[1](k)
            for xins, xt in xshare[i]:
                k.wait_lg(xt)
                if callable(xins):
                    xins(k)
                else:
                    k.e(xins)
    while fillers:
        fillers.pop(0)[1](k)
    k.stamp(3)
```

```python
import math
import struct
import sys
from asmlib import Kern, VAlloc, vr, gemm_loop

T, D, H, DH, F = 2048, 640, 32, 20, 1728
SEC = 0x280000
WS_Q, WS_K, WS_V, WS_O, WS_H = 0, SEC, 2 * SEC, 3 * SEC, 4 * SEC
WS_S = 5 * SEC
WS_S_SIZE = T * 8 * 8
WS_G = 5 * SEC + 0x80000
WS_G_SIZE = T * F * 2
WS_PO = WS_G + WS_G_SIZE
WS_PD = WS_PO + D * D * 2
EPS = 1e-5


def f32(x):
    return '0x%08x' % struct.unpack('<I', struct.pack('<f', x))[0]


def pack_addr(k, vp, vout, t0, t1, KT, perm=None):
    k.e(f's_mov_b32 s33, {(2**32 + 79) // 80:#x}')
    k.e(f'v_mul_hi_u32 v{t0}, v{vp}, s33')
    k.e(f'v_mul_u32_u24 v{t1}, 80, v{t0}')
    k.e(f'v_sub_u32 v{t1}, v{vp}, v{t1}')
    if perm:
        hd, d, u = perm
        k.e(f'v_mul_u32_u24 v{hd}, 3277, v{t0}')
        k.e(f'v_lshrrev_b32 v{hd}, 16, v{hd}')
        k.e(f'v_mul_u32_u24 v{d}, 20, v{hd}')
        k.e(f'v_sub_u32 v{d}, v{t0}, v{d}')
        k.e(f'v_lshl_add_u32 v{t0}, v{hd}, 4, v{d}')
        k.e(f'v_bfe_u32 v{u}, v{hd}, 1, 3')
        k.e(f'v_lshl_add_u32 v{vout}, v{u}, 4, v{d}')
        k.e(f'v_and_b32 v{u}, 1, v{hd}')
        k.e(f'v_lshl_add_u32 v{vout}, v{u}, 2, v{vout}')
        k.e(f'v_lshrrev_b32 v{u}, 4, v{hd}')
        k.e(f'v_lshl_add_u32 v{vout}, v{u}, 3, v{vout}')
        k.e(f'v_add_u32 v{vout}, 496, v{vout}')
        k.e(f'v_cmp_lt_u32 vcc, 15, v{d}')
        k.e(f'v_cndmask_b32 v{t0}, v{t0}, v{vout}, vcc')
    k.e(f'v_mul_u32_u24 v{vout}, 160, v{t0}')
    k.e(f'v_lshl_add_u32 v{vout}, v{t1}, 4, v{vout}')
    k.e(f'v_mul_u32_u24 v{t1}, 205, v{t1}')
    k.e(f'v_lshrrev_b32 v{t1}, 11, v{t1}')
    k.e(f's_mov_b32 s33, {KT*160 - 160}')
    k.e(f'v_mad_u32_u24 v{vout}, v{t1}, s33, v{vout}')
    for r in range(80):
        assert (r * 205) >> 11 == r // 10
    m = (2**32 + 79) // 80
    for p in list(range(0, 300000, 997)) + [79, 80, 159, 160, F * 80 - 1, F * 80, 4096 * 64 - 1]:
        assert (p * m) >> 32 == p // 80


def common_prologue(k, nwg):
    k.e(f's_cmp_ge_u32 s2, {nwg}')
    k.e(f's_cbranch_scc1 {k.name}_end')
    k.stamp(0)


def end(k, kidx):
    k.dump_stamps(4, kidx)
    k.label(f'{k.name}_end')
    k.e('s_endpgm')


def interleave(k, main, side, every):
    side = list(side)
    for i, m in enumerate(main):
        if i % every == 0 and side:
            side.pop(0)(k)
        m(k) if callable(m) else k.e(m)
    for f in side:
        f(k)


def gen_qkv(PF=0, PRIO=0, HPRIO=0, SPRIO=0):
    k = Kern('qkv_kernel')
    NC, SLOTS, SLOT = 10, 4, 32768
    EPI = SLOTS * SLOT
    lds_bytes = EPI + 2048
    va = VAlloc(1)
    vL = va()
    vT = [va() for _ in range(8)]
    t0, t1, t2, t3, r31, hh = vT[:6]
    base = va.n
    nsets = 2
    vRA = [[va() for _ in range(4)] for _ in range(nsets)]
    vRB = [[va() for _ in range(4)] for _ in range(nsets)]
    vAd = [va() for _ in range(16)]
    sel = va(4)
    csa = va(4)
    aF = [va(4), va(4)]
    bF = [[va(4) for _ in range(4)] for _ in range(2)]
    acc = [va(16) for _ in range(4)]
    ep = bF[0][0]
    vPFd, vPFa = va(), va()
    vh = VAlloc(base)
    vA = [vh(), vh()]
    vB, vRS = vh(), vh()
    hs = [vh() for _ in range(4)]
    hq = [vh() for _ in range(4)]
    hu = [vh() for _ in range(8)]
    hd = [vh(4) for _ in range(4)]

    common_prologue(k, 256)
    k.e('s_load_dwordx4 s[4:7], s[0:1], 0')
    k.e('s_load_dwordx2 s[8:9], s[0:1], 72')
    k.e('s_load_dwordx2 s[10:11], s[0:1], 16')
    k.e(f'v_lshrrev_b32 v{t0}, 6, v0')
    k.e(f'v_and_b32 v{vL}, 63, v0')
    k.e(f'v_readfirstlane_b32 s3, v{t0}')
    lPack, lHelp, lV, lStat = k.newlabel('pack'), k.newlabel('help'), k.newlabel('vpath'), k.newlabel('stat')
    k.e('s_cmp_ge_u32 s2, 240')
    k.e(f's_cbranch_scc1 {lPack}')
    k.e('s_and_b32 s24, s3, 3')
    k.e('s_and_b32 s31, s2, 7')
    k.e('s_lshr_b32 s26, s2, 3')
    k.e('s_mov_b32 s30, s26')
    k.e('s_and_b32 s33, s31, 1')
    k.e('s_mul_i32 s33, s33, 30')
    k.e('s_add_u32 s26, s26, s33')
    k.e('s_and_b32 s25, s26, 3')
    k.e('s_lshr_b32 s26, s26, 2')
    k.e('s_lshr_b32 s33, s31, 1')
    k.e('s_lshl_b32 s33, s33, 2')
    k.e('s_add_u32 s25, s25, s33')
    k.e('s_lshl_b32 s32, s24, 12')
    k.e(f'v_and_b32 v{r31}, 31, v{vL}')
    k.e(f'v_lshrrev_b32 v{hh}, 5, v{vL}')
    k.e('s_cmp_ge_u32 s3, 8')
    k.e(f's_cbranch_scc1 {lStat}')
    k.e('s_cmp_ge_u32 s3, 4')
    k.e(f's_cbranch_scc1 {lHelp}')

    if PRIO:
        k.e(f's_setprio {PRIO}')
    k.e('s_mul_i32 s36, s26, 205')
    k.e('s_lshr_b32 s36, s36, 10')
    k.e('s_mul_i32 s37, s36, 5')
    k.e('s_sub_u32 s37, s26, s37')
    k.e('s_lshl_b32 s38, s25, 2')
    k.e('s_add_u32 s38, s38, s24')
    k.e('s_mul_i32 s38, s38, 1280')
    k.e(f'v_bfe_u32 v{t0}, v{vL}, 1, 3')
    k.e(f'v_xor_b32 v{t0}, v{t0}, v{hh}')
    k.e(f'v_lshlrev_b32 v{t0}, 4, v{t0}')
    k.e(f'v_lshl_add_u32 v{t0}, v{r31}, 7, v{t0}')
    k.e(f'v_add_u32 v{t0}, s32, v{t0}')
    for ks in range(4):
        k.e(f'v_xor_b32 v{vRA[0][ks]}, {ks*32}, v{t0}')
    k.e(f'v_bfe_u32 v{t0}, v{vL}, 2, 2')
    k.e(f'v_lshl_add_u32 v{t1}, v{hh}, 3, v{t0}')
    k.e(f'v_lshlrev_b32 v{t1}, 8, v{t1}')
    k.e(f'v_bfe_u32 v{t2}, v{vL}, 4, 1')
    k.e(f'v_lshl_add_u32 v{t1}, v{t2}, 5, v{t1}')
    k.e(f'v_and_b32 v{t3}, 15, v{vL}')
    k.e(f'v_cmp_eq_u32 vcc, v{t2}, v{t3}')
    k.e(f'v_mov_b32 v{t3}, 0x3f803f80')
    for r in range(4):
        k.e(f'v_cndmask_b32 v{sel+r}, 0, v{t3}, vcc')
    k.e(f'v_and_b32 v{t2}, 3, v{vL}')
    k.e(f'v_lshl_add_u32 v{t1}, v{t2}, 3, v{t1}')
    k.e(f'v_add_u32 v{t1}, 16384, v{t1}')
    for j in range(4):
        k.e(f's_add_u32 s33, s24, {j}')
        k.e('s_and_b32 s33, s33, 3')
        k.e(f'v_xor_b32 v{t2}, s33, v{t0}')
        k.e(f'v_lshl_add_u32 v{vRB[0][j]}, v{t2}, 6, v{t1}')
    for j in range(4):
        k.e(f'v_add_u32 v{vRA[1][j]}, 65536, v{vRA[0][j]}')
        k.e(f'v_add_u32 v{vRB[1][j]}, 65536, v{vRB[0][j]}')
    if PF:
        k.e(f'v_mul_u32_u24 v{t0}, 1280, v{vL}')
        k.e(f'v_lshrrev_b32 v{t1}, 4, v{vL}')
        k.e(f'v_mul_u32_u24 v{t1}, 3840, v{t1}')
        k.e(f'v_and_b32 v{t2}, 15, v{vL}')
        k.e(f'v_lshl_add_u32 v{t1}, v{t2}, 7, v{t1}')
        k.e('s_lshr_b32 s44, s31, 1')
        k.e('s_lshl_b32 s44, s44, 3')
        k.e('s_add_u32 s44, s44, s30')
        k.e(f's_mul_i32 s44, s44, {64*1280}')
        k.e('s_sub_u32 s45, s30, 8')
        k.e(f's_mul_i32 s45, s45, {4*3840}')
        k.e('s_and_b32 s33, s31, 1')
        k.e(f's_mul_i32 s33, s33, {7*256}')
        k.e('s_add_u32 s45, s45, s33')
        k.e('s_cmp_lt_u32 s30, 8')
        k.e('s_cselect_b64 vcc, -1, 0')
        k.e('s_cselect_b32 s44, s44, s45')
        k.e('s_movk_i32 s46, 128')
        k.e('s_cselect_b32 s45, s46, 245760')
        k.e(f'v_cndmask_b32 v{vPFa}, v{t1}, v{t0}, vcc')
        k.e('s_add_u32 s33, s24, 2')
        k.e('s_mul_i32 s33, s33, s45')
        k.e('s_add_u32 s44, s44, s33')
        k.e('s_lshl_b32 s45, s45, 2')
        k.e('s_add_u32 s45, s45, s44')
    k.e('s_waitcnt lgkmcnt(0)')
    if PF:
        k.e('s_cmp_lt_u32 s30, 8')
        k.e('s_cselect_b32 s40, s4, s6')
        k.e('s_cselect_b32 s41, s5, s7')
        k.e('s_and_b32 s41, s41, 0xffff')
        k.e('s_cmp_lt_u32 s30, 8')
        k.e(f's_mov_b32 s46, {D*3*D*2}')
        k.e(f's_cselect_b32 s42, {SEC}, s46')
        k.e('s_cmp_lt_u32 s30, 24')
        k.e('s_cselect_b32 s42, s42, 0')
        k.e('s_mov_b32 s43, 0x20000')
        if PF == 1:
            k.e(f'buffer_load_dword v{vPFd}, v{vPFa}, s[40:43], s44 offen')
            k.e(f'buffer_load_dword v{vPFd}, v{vPFa}, s[40:43], s45 offen')
    k.e(f's_mul_i32 s33, s36, {SEC}')
    k.e('s_add_u32 s20, s8, s33')
    k.e('s_addc_u32 s21, s9, 0')
    k.e('s_and_b32 s21, s21, 0xffff')
    k.e(f's_mov_b32 s22, {SEC}')
    k.e('s_mov_b32 s23, 0x20000')
    for n4 in range(160):
        assert (n4 * 205) >> 10 == n4 // 5
    for n in range(640):
        assert (n * 3277) >> 16 == n // 20

    def main(vpath):
        def reads(s):
            c, ks = divmod(s, 4)
            off = (c % SLOTS) * SLOT
            st, o = divmod(off, 65536)
            b = s & 1
            L = [(f'ds_read_b128 {vr(aF[b],4)}, v{vRA[st][ks]} offset:{o}', ('a', s))]
            for j in range(4):
                for j2 in range(2):
                    L.append((f'ds_read_b64_tr_b16 {vr(bF[b][j]+2*j2,2)}, v{vRB[st][j]} offset:{o + ks*4096 + j2*1024}', ('b', s, j)))
            return L

        def mfmas(s):
            b = s & 1
            L = []
            for j in range(4):
                cin = vr(acc[j], 16) if s else '0'
                x, w = vr(aF[b], 4), vr(bF[b][j], 4)
                o0, o1 = (x, w) if vpath else (w, x)
                L.append((f'v_mfma_f32_32x32x16_bf16 {vr(acc[j],16)}, {o0}, {o1}, {cin}', [('a', s), ('b', s, j)], []))
            return L

        def extras(s):
            b = s & 1
            return [(f'v_mfma_f32_16x16x32_bf16 {vr(csa,4)}, {vr(sel,4)}, {vr(bF[b][0],4)}, {vr(csa,4) if s else 0}', [('b', s, 0)])]

        def sync(s):
            if s % 4:
                return None

            def f(k):
                if s:
                    k.wait_lg_all()
                k.e('s_barrier')
                if PF == 2 and s == 0:
                    k.e(f'buffer_load_dword v{vPFd}, v{vPFa}, s[40:43], s44 offen')
                    k.e(f'buffer_load_dword v{vPFd}, v{vPFa}, s[40:43], s45 offen')
            return f
        gemm_loop(k, NC * 4, reads, mfmas, extras, sync, [], stamp_steps=(8, 16, 24, 32))

        k.e('s_lshl_b32 s33, s24, 7')
        k.e(f's_add_u32 s33, s33, {EPI}')
        k.e(f'v_lshl_add_u32 v{t2}, v{vL}, 2, s33')
        k.e('s_mov_b64 exec, 0xffff')
        k.lds(f'ds_write2_b32 v{t2}, v{csa}, v{csa+1} offset0:0 offset1:16', 'w')
        k.e('s_mov_b64 exec, -1')
        k.e('s_lshl_b32 s39, s24, 8')
        k.e(f's_add_u32 s39, s39, {EPI+1024}')
        k.wait_lg_all()
        k.e('s_barrier')

    k.e('s_cmp_ge_u32 s26, 10')
    k.e(f's_cbranch_scc1 {lV}')
    for j in range(4):
        k.e(f's_add_u32 s33, s24, {j}')
        k.e('s_and_b32 s33, s33, 3')
        k.e('s_lshl_b32 s33, s33, 3')
        k.e('s_lshl_b32 s34, s37, 5')
        k.e('s_add_u32 s39, s33, s34')
        for jq in range(4):
            a = vAd[j * 4 + jq]
            k.e(f'v_add_u32 v{t0}, s39, v{hh}')
            if jq:
                k.e(f'v_add_u32 v{t0}, {2*jq}, v{t0}')
            k.e(f'v_mul_u32_u24 v{t1}, 205, v{t0}')
            k.e(f'v_lshrrev_b32 v{t1}, 10, v{t1}')
            k.e(f'v_mul_u32_u24 v{t2}, 5, v{t1}')
            k.e(f'v_sub_u32 v{t2}, v{t0}, v{t2}')
            k.e(f'v_lshrrev_b32 v{t3}, 1, v{t2}')
            k.e(f'v_lshlrev_b32 v{t3}, 9, v{t3}')
            k.e(f'v_and_b32 v{t0}, 1, v{t2}')
            k.e(f'v_lshl_add_u32 v{t3}, v{t0}, 3, v{t3}')
            k.e(f'v_cmp_eq_u32 vcc, 4, v{t2}')
            k.e(f's_mov_b32 s33, {64*1280}')
            k.e(f'v_mad_u32_u24 v{t3}, v{t1}, s33, v{t3}')
            k.e(f'v_cndmask_b32 v{t0}, 4, 3, vcc')
            k.e(f'v_lshlrev_b32 v{t0}, v{t0}, v{r31}')
            k.e(f'v_add_u32 v{a}, v{t3}, v{t0}')
    main(False)
    k.e(f'v_lshl_add_u32 v{t2}, v{r31}, 2, s39')
    k.lds(f'ds_read2_b32 {vr(t0,2)}, v{t2} offset0:0 offset1:32', 'mr')
    k.e(f'v_lshlrev_b32 v{t2}, 4, v{hh}')
    k.e('s_cmp_eq_u32 s36, 0')
    k.e(f's_cselect_b32 s34, {f32(DH ** -0.5 * math.log2(math.e))}, 1.0')

    def csread(j):
        k.e(f's_add_u32 s33, s24, {j}')
        k.e('s_and_b32 s33, s33, 3')
        k.e('s_lshl_b32 s33, s33, 7')
        k.e(f's_add_u32 s33, s33, {EPI}')
        k.e(f'v_add_u32 v{t3}, s33, v{t2}')
        for jq in range(4):
            k.lds(f'ds_read_b128 {vr(ep+(j&1)*16+4*jq,4)}, v{t3} offset:{jq*32}', ('cs', j, jq))
    csread(0)
    k.wait_lg('mr')
    k.e(f'v_mul_f32 v{t1}, s34, v{t1}')
    k.e(f'v_mul_f32 v{t0}, v{t0}, v{t1}')
    for j in range(4):
        if j + 1 < 4:
            csread(j + 1)
        cb_ = ep + (j & 1) * 16
        for jq in range(4):
            k.wait_lg(('cs', j, jq))
            for i in range(4):
                k.e(f'v_mul_f32 v{cb_+4*jq+i}, v{t0}, v{cb_+4*jq+i}')
            for i in range(4):
                r = acc[j] + 4 * jq + i
                k.e(f'v_fma_f32 v{r}, v{r}, v{t1}, -v{cb_+4*jq+i}')
            r = acc[j] + 4 * jq
            k.e(f'v_cvt_pk_bf16_f32 v{r}, v{r}, v{r+1}')
            k.e(f'v_cvt_pk_bf16_f32 v{r+1}, v{r+2}, v{r+3}')
            k.vmem(f'buffer_store_dwordx2 {vr(r,2)}, v{vAd[j*4+jq]}, s[20:23], s38 offen', 'st')
    k.dump_stamps(4, 0, 3)
    k.e('s_endpgm')

    k.label(lV)
    k.vm, k.lg = [], []
    for j in range(4):
        k.e(f's_add_u32 s33, s24, {j}')
        k.e('s_and_b32 s33, s33, 3')
        k.e('s_lshl_b32 s33, s33, 5')
        k.e('s_lshl_b32 s34, s37, 7')
        k.e('s_add_u32 s39, s33, s34')
        k.e(f'v_add_u32 v{t0}, s39, v{r31}')
        k.e(f'v_mul_u32_u24 v{t1}, 3277, v{t0}')
        k.e(f'v_lshrrev_b32 v{t1}, 16, v{t1}')
        k.e(f'v_mul_u32_u24 v{t2}, 20, v{t1}')
        k.e(f'v_sub_u32 v{t2}, v{t0}, v{t2}')
        k.e(f'v_mul_u32_u24 v{t3}, 320, v{hh}')
        k.e(f'v_lshl_add_u32 v{t3}, v{t2}, 4, v{t3}')
        k.e(f's_mov_b32 s33, {64*1280}')
        k.e(f'v_mad_u32_u24 v{vAd[j]}, v{t1}, s33, v{t3}')
    main(True)
    k.e(f'v_lshl_add_u32 v{t2}, v{hh}, 4, s39')
    for jq in range(4):
        k.lds(f'ds_read_b128 {vr(ep+4*jq,4)}, v{t2} offset:{jq*32}', 'st')
        k.lds(f'ds_read_b128 {vr(ep+16+4*jq,4)}, v{t2} offset:{128+jq*32}', 'st')
    csr = [vT[0], vT[1], vT[6], vT[7]]
    for j in range(4):
        k.e(f's_add_u32 s33, s24, {j}')
        k.e('s_and_b32 s33, s33, 3')
        k.e('s_lshl_b32 s33, s33, 7')
        k.e(f's_add_u32 s33, s33, {EPI}')
        k.e(f'v_lshl_add_u32 v{t3}, v{r31}, 2, s33')
        k.lds(f'ds_read_b32 v{csr[j]}, v{t3}', 'st')
    k.wait_lg_all()
    for j in range(4):
        for r in range(16):
            k.e(f'v_fma_f32 v{acc[j]+r}, -v{ep+r}, v{csr[j]}, v{acc[j]+r}')
        for r in range(16):
            k.e(f'v_mul_f32 v{acc[j]+r}, v{ep+16+r}, v{acc[j]+r}')
        for r in range(8):
            k.e(f'v_cvt_pk_bf16_f32 v{acc[j]+r}, v{acc[j]+2*r}, v{acc[j]+2*r+1}')
        k.vmem(f'buffer_store_dwordx4 {vr(acc[j],4)}, v{vAd[j]}, s[20:23], s38 offen', 'st')
        k.vmem(f'buffer_store_dwordx4 {vr(acc[j]+4,4)}, v{vAd[j]}, s[20:23], s38 offen offset:640', 'st')
    k.dump_stamps(4, 0, 3)
    k.e('s_endpgm')

    k.label(lHelp)
    k.vm, k.lg = [], []
    if HPRIO:
        k.e(f's_setprio {HPRIO}')
    k.e('s_lshl_b32 s28, s25, 7')
    k.e('s_lshl_b32 s33, s24, 5')
    k.e('s_add_u32 s28, s28, s33')
    k.e('s_mul_i32 s28, s28, 1280')
    k.e('s_mul_i32 s29, s24, 61440')
    k.e('s_lshl_b32 s33, s26, 8')
    k.e('s_add_u32 s29, s29, s33')
    k.e(f'v_lshrrev_b32 v{t0}, 3, v{vL}')
    k.e(f'v_lshrrev_b32 v{t1}, 4, v{vL}')
    k.e(f'v_and_b32 v{t2}, 7, v{vL}')
    k.e(f'v_mul_u32_u24 v{t0}, 1280, v{t0}')
    k.e(f'v_xor_b32 v{t3}, v{t2}, v{t1}')
    k.e(f'v_lshl_add_u32 v{vA[0]}, v{t3}, 4, v{t0}')
    k.e(f'v_xor_b32 v{t3}, 4, v{t3}')
    k.e(f'v_lshl_add_u32 v{vA[1]}, v{t3}, 4, v{t0}')
    k.e(f'v_and_b32 v{t2}, 15, v{vL}')
    k.e(f'v_lshlrev_b32 v{t3}, 2, v{t1}')
    k.e(f'v_xor_b32 v{t3}, v{t2}, v{t3}')
    k.e(f'v_mul_u32_u24 v{t0}, 3840, v{t1}')
    k.e(f'v_lshl_add_u32 v{vB}, v{t3}, 4, v{t0}')
    k.e('s_waitcnt lgkmcnt(0)')
    k.srd(12, 4, 0, SEC)
    k.srd(16, 6, 0, D * 3 * D * 2)

    def issue_chunk(c):
        slot = c % SLOTS
        fs = []
        for i in range(4):
            def fa(k, i=i):
                k.e(f's_add_u32 m0, s32, {slot*SLOT + i*1024}')
                k.e(f's_add_u32 s33, s28, {c*128 + i*10240}')
                k.vmem(f'buffer_load_dwordx4 v{vA[i&1]}, s[12:15], s33 offen lds', ('c', c))

            def fb(k, i=i):
                k.e(f's_add_u32 m0, s32, {slot*SLOT + 16384 + i*1024}')
                k.e(f's_add_u32 s33, s29, {c*245760 + i*15360}')
                k.vmem(f'buffer_load_dwordx4 v{vB}, s[16:19], s33 offen lds', ('c', c))
            fs += [fa, fb]
        return fs

    for f in issue_chunk(0) + issue_chunk(1):
        f(k)
    for c in range(NC):
        k.wait_vm(('c', c))
        k.e('s_barrier')
        for cc in ([2, 3] if c == 0 else [c + 3]):
            if cc < NC:
                for f in issue_chunk(cc):
                    f(k)
    k.e('s_endpgm')

    k.label(lStat)
    k.vm, k.lg = [], []
    if SPRIO:
        k.e(f's_setprio {SPRIO}')
    k.e(f'v_lshl_add_u32 v{vRS}, v{vL}, 4, s32')
    k.e(f'v_add_u32 v{t0}, 65536, v{vRS}')
    for r in hs + hq:
        k.e(f'v_mov_b32 v{r}, 0')
    k.e('s_waitcnt lgkmcnt(0)')
    for c in range(NC):
        slot = c % SLOTS
        ra = t0 if slot * SLOT >= 65536 else vRS
        k.e('s_barrier')
        for i in range(4):
            k.lds(f'ds_read_b128 {vr(hd[i],4)}, v{ra} offset:{(slot*SLOT) % 65536 + i*1024}', ('h', i))
        for r in range(4):
            for i in range(4):
                if r == 0:
                    k.wait_lg(('h', i))
                lo, hi = hu[2 * i], hu[2 * i + 1]
                k.e(f'v_lshlrev_b32 v{lo}, 16, v{hd[i]+r}')
                k.e(f'v_and_b32 v{hi}, 0xffff0000, v{hd[i]+r}')
            for i in range(4):
                k.e(f'v_add_f32 v{hs[i]}, v{hs[i]}, v{hu[2*i]}')
                k.e(f'v_fma_f32 v{hq[i]}, v{hu[2*i]}, v{hu[2*i]}, v{hq[i]}')
            for i in range(4):
                k.e(f'v_add_f32 v{hs[i]}, v{hs[i]}, v{hu[2*i+1]}')
                k.e(f'v_fma_f32 v{hq[i]}, v{hu[2*i+1]}, v{hu[2*i+1]}, v{hq[i]}')
    for step in ('quad_perm:[1,0,3,2]', 'quad_perm:[2,3,0,1]', 'row_half_mirror'):
        for r in hs + hq:
            k.e(f'v_add_f32_dpp v{r}, v{r}, v{r} {step} row_mask:0xf bank_mask:0xf')
    k.e('s_lshl_b32 s33, s24, 8')
    k.e(f's_add_u32 s33, s33, {EPI+1024}')
    k.e(f'v_lshrrev_b32 v{t0}, 3, v{vL}')
    k.e(f'v_lshl_add_u32 v{t0}, v{t0}, 2, s33')
    for i in range(4):
        k.e(f'v_mul_f32 v{hs[i]}, {f32(1.0/D)}, v{hs[i]}')
        k.e(f'v_mul_f32 v{hq[i]}, {f32(1.0/D)}, v{hq[i]}')
    for i in range(4):
        k.e(f'v_fma_f32 v{hq[i]}, -v{hs[i]}, v{hs[i]}, v{hq[i]}')
    for i in range(4):
        k.e(f'v_max_f32 v{hq[i]}, 0, v{hq[i]}')
    for i in range(4):
        k.e(f'v_add_f32 v{hq[i]}, {f32(EPS)}, v{hq[i]}')
    for i in range(4):
        k.e(f'v_rsq_f32 v{hq[i]}, v{hq[i]}')
    for i in range(4):
        k.lds(f'ds_write2_b32 v{t0}, v{hs[i]}, v{hq[i]} offset0:{8*i} offset1:{32+8*i}', 'w')
    k.wait_lg_all()
    k.e('s_barrier')
    k.e('s_endpgm')

    k.label(lPack)
    k.vm, k.lg = [], []
    NPK = 5
    k.e('s_sub_u32 s25, s2, 240')
    k.e('s_mul_i32 s25, s25, 12')
    k.e('s_add_u32 s25, s25, s3')
    k.e('s_lshl_b32 s25, s25, 6')
    k.e(f'v_add_u32 v{vT[4]}, s25, v{vL}')
    k.e('s_waitcnt lgkmcnt(0)')
    k.srd(12, 10, 0, D * D * 2)
    k.srd(16, 8, WS_PO, D * D * 2)
    k.e(f'v_lshlrev_b32 v{vT[5]}, 4, v{vT[4]}')
    for i in range(NPK):
        k.e(f's_mov_b32 s33, {i*192*1024}')
        k.vmem(f'buffer_load_dwordx4 {vr(acc[0]+4*i,4)}, v{vT[5]}, s[12:15], s33 offen', ('p', i))
    for i in range(NPK):
        pack_addr(k, vT[4], vAd[i], vT[0], vT[1], D, perm=(vT[2], vT[3], vT[6]))
        k.e(f'v_cmp_le_u32 vcc, {D*80}, v{vT[4]}')
        k.e(f'v_cndmask_b32 v{vAd[i]}, v{vAd[i]}, -1, vcc')
        k.e(f'v_add_u32 v{vT[4]}, {192*64}, v{vT[4]}')
    for i in range(NPK):
        k.wait_vm(('p', i))
        k.vmem(f'buffer_store_dwordx4 {vr(acc[0]+4*i,4)}, v{vAd[i]}, s[16:19], 0 offen', 'st')
    k.label(f'{k.name}_end')
    k.e('s_endpgm')
    return k, (256, 768, lds_bytes)


def gen_attn(PF=1, PFO=0, PKB=8, PKW=0):
    k = Kern('attn_kernel')
    NB = 9
    BIG = 1e30
    BIGBF = (struct.unpack('<I', struct.pack('<f', -BIG))[0] >> 16)
    VOFF = 20480
    va = VAlloc(1)
    vL, r31, hh = va(), va(), va()
    t = [va() for _ in range(6)]
    vK1, vQ2 = va(), va()
    vRK1, vRK2, vRV = va(), va(), va()
    vO1, vO2 = va(), va()
    vM = va()
    vPF = [va() for _ in range(5)]
    vPA = [va(), va()]
    pk = [va(4), va(4)]
    q1, q2 = va(4), va(4)
    k1 = [va(4) for _ in range(NB)]
    k2 = [va(4) for _ in range(NB)]
    vv = [va(8) for _ in range(3)]
    S = [va(16), va(16)]
    bias = [va(16), va(16)]
    O = va(16)

    common_prologue(k, 256)
    k.e('s_load_dwordx2 s[8:9], s[0:1], 72')
    k.e('s_load_dwordx2 s[4:5], s[0:1], 48')
    k.e('s_load_dwordx4 s[64:67], s[0:1], 32')
    k.e(f'v_lshrrev_b32 v{t[0]}, 6, v0')
    k.e(f'v_and_b32 v{vL}, 63, v0')
    k.e(f'v_readfirstlane_b32 s24, v{t[0]}')
    k.e('s_and_b32 s39, s2, 7')
    k.e('s_lshr_b32 s70, s2, 3')
    k.e('s_and_b32 s26, s70, 7')
    k.e('s_lshr_b32 s27, s70, 3')
    k.e('s_lshl_b32 s33, s39, 2')
    k.e('s_add_u32 s27, s27, s33')
    k.e('s_lshl_b32 s25, s26, 3')
    k.e('s_add_u32 s25, s25, s24')
    k.e('s_mul_i32 s28, s27, 81920')
    k.e(f'v_and_b32 v{r31}, 31, v{vL}')
    k.e(f'v_lshrrev_b32 v{hh}, 5, v{vL}')
    k.e(f'v_lshlrev_b32 v{vK1}, 4, v{vL}')
    k.e(f'v_lshlrev_b32 v{t[0]}, 3, v{r31}')
    k.e(f'v_add_u32 v{t[0]}, 1024, v{t[0]}')
    k.e(f'v_lshlrev_b32 v{t[1]}, 30, v{hh}')
    k.e(f'v_or_b32 v{vQ2}, v{t[0]}, v{t[1]}')
    k.e('s_mul_i32 s29, s25, 1280')
    k.e('s_add_u32 s29, s29, s28')
    k.e('s_mul_i32 s30, s26, 10240')
    k.e('s_add_u32 s30, s30, s28')
    k.e('s_sub_u32 s30, s30, 10240')
    k.e('s_lshl_b32 s31, s24, 10')
    k.e('s_add_u32 s30, s30, s31')
    k.e('s_waitcnt lgkmcnt(0)')
    k.srd(12, 8, WS_Q, SEC)
    k.srd(16, 8, WS_K, 2 * SEC)
    k.srd(40, 8, WS_O, SEC)
    k.vmem(f'buffer_load_dwordx4 {vr(q1,4)}, v{vK1}, s[12:15], s29 offen', 'q')
    k.vmem(f'buffer_load_dwordx2 {vr(q2,2)}, v{vQ2}, s[12:15], s29 offen', 'q')
    for j in range(5):
        k.e(f's_add_u32 m0, s31, {8192*j}')
        if j < 2:
            k.e(f's_add_u32 s33, s30, {8192*j}')
            k.e('s_max_i32 s33, s33, s28')
        elif j > 2:
            k.e(f's_add_u32 s33, s30, {8192*j - VOFF}')
            k.e('s_max_i32 s33, s33, s28')
            k.e(f's_add_u32 s33, s33, {SEC}')
        else:
            k.e('s_cmp_lt_u32 s24, 4')
            k.e(f's_cselect_b32 s34, 0, {VOFF}')
            k.e(f's_cselect_b32 s35, 0, {SEC}')
            k.e(f's_add_u32 s33, s30, {8192*j}')
            k.e('s_sub_u32 s33, s33, s34')
            k.e('s_max_i32 s33, s33, s28')
            k.e('s_add_u32 s33, s33, s35')
        k.vmem(f'buffer_load_dwordx4 v{vK1}, s[16:19], s33 offen lds', 'k' if j < 3 else 'v')
    k.srd(20, 4, 0, F * D * 2)
    k.srd(60, 8, WS_PD, F * D * 2)
    k.e('s_lshl_b32 s36, s2, 3')
    k.e('s_add_u32 s36, s36, s24')
    k.e('s_lshl_b32 s3, s36, 10')
    k.e(f's_add_u32 s71, s3, {2048*1024}')
    k.e(f's_min_u32 s71, s71, {F*D*2}')
    k.vmem(f'buffer_load_dwordx4 {vr(pk[0],4)}, v{vK1}, s[20:23], s3 offen', 'pk')
    k.vmem(f'buffer_load_dwordx4 {vr(pk[1],4)}, v{vK1}, s[20:23], s71 offen', 'pk')
    k.e('s_lshl_b32 s37, s36, 6')
    k.e(f'v_add_u32 v{t[2]}, s37, v{vL}')
    pack_addr(k, t[2], vPA[0], t[0], t[1], F)
    k.e(f'v_add_u32 v{t[2]}, {2048*64}, v{t[2]}')
    pack_addr(k, t[2], vPA[1], t[0], t[1], F)
    k.e(f'v_cmp_le_u32 vcc, {F*80}, v{t[2]}')
    k.e(f'v_cndmask_b32 v{vPA[1]}, v{vPA[1]}, -1, vcc')
    if PF:
        k.srd(44, 8, WS_PO, D * D * 2)
        k.srd(48, 64, 0, D * F * 2)
        k.srd(52, 66, 0, D * F * 2)
        k.e(f'v_lshlrev_b32 v{vPF[3]}, 7, v{vL}')
        k.e('s_lshl_b32 s68, s70, 2')
        k.e('s_add_u32 s68, s68, s24')
        k.e('s_sub_u32 s68, s68, 4')
        k.e('s_lshl_b32 s68, s68, 13')
        k.e(f's_min_u32 s68, s68, {D*D*2}')
        k.e(f'v_and_b32 v{t[1]}, 15, v{vL}')
        k.e(f'v_min_u32 v{t[1]}, 13, v{t[1]}')
        k.e(f'v_lshrrev_b32 v{t[2]}, 4, v{vL}')
        k.e(f'v_mul_u32_u24 v{t[2]}, 3456, v{t[2]}')
        k.e(f'v_lshl_add_u32 v{vPF[4]}, v{t[1]}, 7, v{t[2]}')
        k.e('s_and_b32 s69, s39, 1')
        k.e(f's_mul_i32 s69, s69, {13*128}')
        k.e('s_mul_i32 s38, s70, 5')
        k.e('s_add_u32 s38, s38, s24')
        k.e(f's_mul_i32 s38, s38, {4*3456}')
        k.e('s_add_u32 s69, s69, s38')

    def pf_slot(w):
        if not PF or w > 7:
            return
        lab = k.newlabel('pf')
        k.e(f's_cmp_lg_u32 s24, {w}')
        k.e(f's_cbranch_scc1 {lab}')
        p0 = k.pos
        if w >= 4:
            k.e(f'buffer_load_dword v{vPF[0]}, v{vPF[3]}, s[44:47], s68 offen')
        if w <= 4:
            k.e(f'buffer_load_dword v{vPF[1]}, v{vPF[4]}, s[48:51], s69 offen')
            k.e(f'buffer_load_dword v{vPF[2]}, v{vPF[4]}, s[52:55], s69 offen')
        k.skip_end(lab, p0)
    k.e('s_mul_i32 s33, s24, 1280')
    k.e(f'v_add_u32 v{vRK1}, s33, v{vK1}')
    k.e(f'v_lshl_add_u32 v{vRK2}, v{r31}, 3, s33')
    k.e(f'v_mul_u32_u24 v{t[0]}, 320, v{hh}')
    k.e(f'v_lshl_add_u32 v{t[0]}, v{r31}, 4, v{t[0]}')
    k.e(f'v_add_u32 v{vRV}, s33, v{t[0]}')
    k.e(f'v_cmp_eq_u32 vcc, 20, v{r31}')
    k.e(f'v_mov_b32 v{t[1]}, 0x3f803f80')
    k.e(f'v_cndmask_b32 v{t[0]}, 0, v{t[1]}, vcc')
    for b in range(3):
        for r in range(8):
            k.e(f'v_mov_b32 v{vv[b]+r}, v{t[0]}')
    for b in range(NB):
        k.e(f's_cmp_lt_u32 s25, {8-b}')
        k.e(f's_cselect_b32 s33, 0x3f80, 0')
        k.e(f'v_mov_b32 v{k2[b]+2}, v{t[1]}')
        k.e(f'v_mov_b32 v{k2[b]+3}, s33')
    k.e(f'v_mov_b32 v{q2+2}, 0')
    k.e(f'v_mov_b32 v{q2+3}, {BIGBF:#x}')
    MK = [56, 58, 6, 10]
    k.e(f'v_lshlrev_b32 v{t[2]}, 2, v{hh}')
    k.e(f'v_sub_u32 v{t[2]}, v{r31}, v{t[2]}')
    k.e(f'v_mov_b32 v{t[3]}, {f32(-BIG)}')
    for r in range(16):
        c = 8 * (r >> 2) + (r & 3)
        k.e(f'v_cmp_le_i32 s[{MK[r&3]}:{MK[r&3]+1}], {c}, v{t[2]}')
        if (r & 3) == 3:
            for rr in range(r - 3, r + 1):
                m = f's[{MK[rr&3]}:{MK[rr&3]+1}]'
                k.e(f'v_cndmask_b32 v{bias[1]+rr}, v{t[3]}, 0, {m}')
                k.e(f'v_cndmask_b32 v{bias[0]+rr}, 0, v{t[3]}, {m}')
    k.e(f'v_bfe_u32 v{t[2]}, v{vL}, 4, 1')
    k.e(f'v_mul_u32_u24 v{t[2]}, 20480, v{t[2]}')
    k.e(f'v_and_b32 v{t[4]}, 15, v{vL}')
    k.e(f'v_lshl_add_u32 v{t[2]}, v{t[4]}, 4, v{t[2]}')
    k.e(f'v_lshl_add_u32 v{vO1}, v{hh}, 8, v{t[2]}')
    k.e(f'v_lshlrev_b32 v{t[4]}, 30, v{hh}')
    k.e(f'v_or_b32 v{vO2}, v{t[2]}, v{t[4]}')
    k.e('s_mul_i32 s32, s25, 40960')
    k.e('s_lshl_b32 s33, s27, 9')
    k.e('s_add_u32 s33, s33, s32')
    k.e('s_and_b32 s34, s27, 15')
    k.e('s_lshl_b32 s34, s34, 8')
    k.e('s_lshr_b32 s35, s27, 4')
    k.e('s_lshl_b32 s35, s35, 3')
    k.e('s_add_u32 s34, s34, s35')
    k.e('s_add_u32 s34, s34, s32')
    k.e('s_add_u32 s34, s34, 16384')

    def smfma(b):
        s = S[b & 1]
        cin = vr(bias[0], 16) if b == 0 else (vr(bias[1], 16) if b == NB - 1 else '0')
        k.e(f'v_mfma_f32_32x32x16_bf16 {vr(s,16)}, {vr(k1[b],4)}, {vr(q1,4)}, {cin}')
        k.e(f'v_mfma_f32_32x32x16_bf16 {vr(s,16)}, {vr(k2[b],4)}, {vr(q2,4)}, {vr(s,16)}')

    def kread(b):
        k.lds(f'ds_read_b128 {vr(k1[b],4)}, v{vRK1} offset:{b*1280}', ('k', b))
        k.lds(f'ds_read_b64 {vr(k2[b],2)}, v{vRK2} offset:{b*1280+1024}', ('k', b))

    def vread(b):
        k.e('s_mov_b32 exec_lo, 0x000fffff')
        k.e('s_mov_b32 exec_hi, 0x000fffff')
        k.lds(f'ds_read_b128 {vr(vv[b%3],4)}, v{vRV} offset:{VOFF+b*1280}', ('v', b))
        k.lds(f'ds_read_b128 {vr(vv[b%3]+4,4)}, v{vRV} offset:{VOFF+b*1280+640}', ('v', b))
        k.e('s_mov_b64 exec, -1')

    k.stamp(1)
    k.wait_vm(['q', 'k'])
    k.e('s_barrier')
    k.stamp(2)
    for b in range(4):
        kread(b)
    k.wait_lg(('k', 0))
    smfma(0)
    for b in range(NB):
        if b + 4 < NB:
            kread(b + 4)
        if b + 1 < NB:
            k.wait_lg(('k', b + 1))
            smfma(b + 1)
        s = S[b & 1]
        if b == 0:
            k.e(f'v_max3_f32 v{vM}, v{s}, v{s+1}, v{s+2}')
            k.e(f'v_max3_f32 v{t[0]}, v{s+3}, v{s+4}, v{s+5}')
            for r in range(6, 16, 4):
                k.e(f'v_max3_f32 v{vM}, v{vM}, v{s+r}, v{s+r+1}')
                if r + 2 < 16:
                    k.e(f'v_max3_f32 v{t[0]}, v{t[0]}, v{s+r+2}, v{s+r+3}')
        else:
            for r in range(0, 16, 4):
                k.e(f'v_max3_f32 v{vM}, v{vM}, v{s+r}, v{s+r+1}')
                k.e(f'v_max3_f32 v{t[0]}, v{t[0]}, v{s+r+2}, v{s+r+3}')
    k.wait_vm('v')
    k.e('s_barrier')
    vread(0)
    vread(1)
    k.e(f'v_max_f32 v{vM}, v{vM}, v{t[0]}')
    k.e(f'v_mov_b32 v{t[0]}, v{vM}')
    k.e(f'v_permlane32_swap_b32 v{vM}, v{t[0]}')
    k.e(f'v_max_f32 v{vM}, v{vM}, v{t[0]}')
    k.e(f'v_cvt_pk_bf16_f32 v{t[0]}, -v{vM}, -v{vM}')
    k.e(f'v_and_b32 v{t[1]}, 0xffff0000, v{t[0]}')
    k.e(f'v_sub_f32 v{t[2]}, -v{vM}, v{t[1]}')
    k.e(f'v_cvt_pk_bf16_f32 v{t[0]}, v{t[1]}, v{t[2]}')
    k.e(f'v_cmp_eq_u32 vcc, 0, v{hh}')
    k.e(f'v_cndmask_b32 v{q2+2}, 0, v{t[0]}, vcc')
    k.stamp(3)
    smfma(0)
    for b in range(NB):
        if b + 1 < NB:
            smfma(b + 1)
        if b + 2 < NB:
            vread(b + 2)
        if b == 0:
            k.wait_vm('pk')
            k.vmem(f'buffer_store_dwordx4 {vr(pk[0],4)}, v{vPA[0]}, s[60:63], 0 offen', 'st')
            k.vmem(f'buffer_store_dwordx4 {vr(pk[1],4)}, v{vPA[1]}, s[60:63], 0 offen', 'st')
        pf_slot([7, 6, 5, 4, 0, 1, 2, 3, 9][b] if PFO else [0, 1, 2, 3, 4, 5, 6, 7, 9][b])
        s = S[b & 1]
        for r in range(16):
            k.e(f'v_exp_f32 v{s+r}, v{s+r}')
        for r in range(8):
            k.e(f'v_cvt_pk_bf16_f32 v{s+r}, v{s+2*r}, v{s+2*r+1}')
        k.wait_lg(('v', b))
        k.e(f'v_mfma_f32_32x32x16_bf16 {vr(O,16)}, {vr(vv[b%3],4)}, {vr(s,4)}, {vr(O,16) if b else 0}')
        k.e(f'v_mfma_f32_32x32x16_bf16 {vr(O,16)}, {vr(vv[b%3]+4,4)}, {vr(s+4,4)}, {vr(O,16)}')
    k.e(f'v_mov_b32 v{t[0]}, v{O+8}')
    k.e(f'v_mov_b32 v{t[1]}, v{O+8}')
    k.e(f'v_permlane32_swap_b32 v{t[0]}, v{t[1]}')
    k.e(f'v_rcp_f32 v{t[1]}, v{t[1]}')
    for r in range(12):
        k.e(f'v_mul_f32 v{O+r}, v{t[1]}, v{O+r}')
    for r in range(6):
        k.e(f'v_cvt_pk_bf16_f32 v{O+r}, v{O+2*r}, v{O+2*r+1}')
    k.vmem(f'buffer_store_dwordx4 {vr(O,4)}, v{vO1}, s[40:43], s33 offen', 'st')
    k.vmem(f'buffer_store_dwordx2 {vr(O+4,2)}, v{vO2}, s[40:43], s34 offen', 'st')
    end(k, 1)
    return k, (256, 512, 40960)


def set_exec(k, lanes):
    if lanes >= 64:
        k.e('s_mov_b64 exec, -1')
    elif lanes > 32:
        k.e(f's_mov_b32 exec_hi, {(1 << (lanes - 32)) - 1:#x}')
    elif lanes == 32:
        k.e('s_mov_b32 exec_hi, 0')
    else:
        k.e(f's_mov_b64 exec, {(1 << lanes) - 1:#x}')


def gen_n640(which, LA=9, PF=0, PRE=3, APF=0):
    wo = which == 'wo'
    k = Kern('wo_kernel' if wo else 'down_kernel')
    KT = D if wo else F
    NS = KT // 32
    CR = 64 if wo else 96
    NC = KT // CR
    SLOTS = NC if wo else 8
    SLOT = CR * 160
    WR = CR // 4
    NP = WR * 10
    NI = (NP + 63) // 64
    XOFF = SLOTS * SLOT
    lds_bytes = XOFF + 4 * 3072
    ABUF = min(NS, LA + 3)
    va = VAlloc(1)
    vL = va()
    t = [va() for _ in range(8)]
    vD = [va() for _ in range(3)]
    vAo = va()
    nsets = (SLOTS * SLOT + 65535) // 65536
    vR = [va() for _ in range(nsets)]
    vX = [va() for _ in range(3)]
    vPF = [va() for _ in range(4)]
    aF = [va(4) for _ in range(ABUF)]
    bF = [[va(4) for _ in range(5)] for _ in range(2)]
    acc = [va(4) for _ in range(5)]
    hres = [va(2) for _ in range(5)]
    ep = va(12)

    common_prologue(k, 256)
    if wo:
        k.e('s_load_dwordx2 s[4:5], s[0:1], 0')
        k.e('s_load_dwordx2 s[6:7], s[0:1], 16')
        k.e('s_load_dwordx4 s[64:67], s[0:1], 32')
    else:
        k.e('s_load_dwordx4 s[4:7], s[0:1], 48')
    k.e('s_load_dwordx2 s[8:9], s[0:1], 72')
    k.e(f'v_lshrrev_b32 v{t[0]}, 6, v0')
    k.e(f'v_and_b32 v{vL}, 63, v0')
    k.e(f'v_readfirstlane_b32 s24, v{t[0]}')
    k.e('s_and_b32 s35, s2, 7')
    k.e('s_lshr_b32 s39, s2, 3')
    k.e('s_lshr_b32 s27, s39, 3')
    k.e('s_and_b32 s26, s39, 7')
    k.e('s_lshl_b32 s25, s35, 2')
    k.e('s_add_u32 s25, s25, s27')
    k.e('s_lshl_b32 s28, s25, 2')
    k.e('s_add_u32 s28, s28, s24')
    k.e(f's_mul_i32 s29, s28, {NS*1024}')
    k.e('s_mul_i32 s31, s26, 160')
    k.e(f's_mul_i32 s32, s24, {WR*160}')
    k.e(f's_mul_i32 s30, s26, {KT*160}')
    k.e('s_add_u32 s30, s30, s32')
    for i in range(len(vD)):
        if i:
            k.e(f'v_add_u32 v{t[0]}, {64*i}, v{vL}')
            src = t[0]
        else:
            src = vL
        k.e(f'v_mul_u32_u24 v{t[1]}, 6554, v{src}')
        k.e(f'v_lshrrev_b32 v{t[1]}, 16, v{t[1]}')
        k.e(f'v_mul_u32_u24 v{t[2]}, 10, v{t[1]}')
        k.e(f'v_sub_u32 v{t[2]}, v{src}, v{t[2]}')
        k.e(f'v_mul_u32_u24 v{t[1]}, 1280, v{t[1]}')
        k.e(f'v_lshl_add_u32 v{vD[i]}, v{t[2]}, 4, v{t[1]}')
    for idx in range(len(vD) * 64):
        assert (idx * 6554) >> 16 == idx // 10
    k.e(f'v_lshlrev_b32 v{vAo}, 4, v{vL}')
    k.e('s_waitcnt lgkmcnt(0)')
    if wo:
        k.srd(12, 8, WS_O, SEC)
        k.srd(16, 8, WS_PO, D * D * 2)
        k.srd(20, 4, 0, SEC)
        k.srd(40, 8, WS_H, SEC)
        k.srd(44, 8, WS_S, WS_S_SIZE)
    else:
        k.srd(12, 8, WS_G, WS_G_SIZE)
        k.srd(16, 8, WS_PD, F * D * 2)
        k.srd(20, 6, 0, SEC)
        k.srd(40, 8, WS_H, SEC)

    def need_chunk(s):
        return (32 * s + 31) // CR

    def first_step(c):
        return min(s for s in range(NS) if need_chunk(s) >= c)

    def a_load(s):
        def f(k):
            k.e(f's_add_u32 s33, s29, {s*1024}')
            k.vmem(f'buffer_load_dwordx4 {vr(aF[s % ABUF],4)}, v{vAo}, s[12:15], s33 offen', ('a', s))
        return (s, f)

    def issue_chunk(c):
        slot = c % SLOTS
        fs = []
        for i in range(NI):
            def fb(k, i=i):
                lanes = min(64, NP - 64 * i)
                k.e(f's_add_u32 m0, s32, {slot*SLOT + i*1024}')
                k.e(f's_add_u32 s33, s30, {c*CR*160 + i*1024}')
                if lanes < 64:
                    set_exec(k, lanes)
                k.vmem(f'buffer_load_dwordx4 v{vAo}, s[16:19], s33 offen lds', ('c', c))
                if lanes < 64:
                    set_exec(k, 64)
            fs.append((first_step(c), fb))
        return fs

    items = []
    for c in range(NC):
        for it in issue_chunk(c):
            items.append((it[0], ('slot', c), it[1]))
        for s in range(NS):
            if need_chunk(s) == c:
                it = a_load(s)
                items.append((it[0], ('areg', s), it[1]))
    state = {'barrier_c': -1, 'step': 0}
    fillers = []

    def release():
        while items:
            ns, gate, fn = items[0]
            if gate[0] == 'slot' and gate[1] - SLOTS > state['barrier_c'] - 2:
                break
            if gate[0] == 'areg' and gate[1] - ABUF > state['step'] - 1:
                break
            fillers.append((ns, fn))
            items.pop(0)

    state['barrier_c'] = 1
    release()
    state['barrier_c'] = -1
    while fillers and fillers[0][0] <= PRE:
        fillers.pop(0)[1](k)
    if APF:
        k.e(f'v_lshlrev_b32 v{t[0]}, 7, v{vL}')
        k.e('s_lshl_b32 s33, s26, 2')
        k.e('s_add_u32 s33, s33, s24')
        k.e(f's_mul_i32 s34, s25, {NS*4096}')
        k.e(f's_cmp_lt_u32 s33, {NS//2}')
        k.e('s_cselect_b32 s34, s34, s14')
        k.e('s_lshl_b32 s33, s33, 13')
        k.e('s_add_u32 s33, s33, s34')
        k.vmem(f'buffer_load_dword v{vPF[2]}, v{t[0]}, s[12:15], s33 offen', 'pf')
    k.e(f's_mul_i32 s36, s24, 3072')
    k.e(f's_add_u32 s36, s36, {XOFF}')
    k.e(f'v_and_b32 v{t[4]}, 15, v{vL}')
    k.e(f'v_lshrrev_b32 v{t[5]}, 4, v{vL}')
    k.e(f'v_lshrrev_b32 v{t[0]}, 1, v{t[5]}')
    k.e(f'v_lshlrev_b32 v{t[0]}, 9, v{t[0]}')
    k.e(f'v_lshl_add_u32 v{t[0]}, v{t[4]}, 4, v{t[0]}')
    k.e(f'v_and_b32 v{t[1]}, 1, v{t[5]}')
    k.e(f'v_lshl_add_u32 v{vX[0]}, v{t[1]}, 3, v{t[0]}')
    k.e('s_lshr_b32 s37, s28, 1')
    k.e('s_mul_i32 s37, s37, 40960')
    k.e('s_and_b32 s33, s28, 1')
    k.e('s_lshl_b32 s33, s33, 8')
    k.e('s_add_u32 s37, s37, s33')
    k.e('s_mul_i32 s33, s26, 5120')
    k.e('s_add_u32 s37, s37, s33')
    k.e('s_mul_i32 s38, s28, 20480')
    k.e('s_add_u32 s38, s38, s31')

    def res_loads():
        fs = []
        if wo:
            for i in range(3):
                def f(k, i=i):
                    k.e(f's_add_u32 m0, s36, {i*1024}')
                    if i == 2:
                        set_exec(k, 32)
                    k.vmem(f'buffer_load_dwordx4 v{vD[i]}, s[20:23], s38 offen lds', 'x')
                    if i == 2:
                        set_exec(k, 64)
                fs.append(f)
        else:
            for j in range(5):
                def f(k, j=j):
                    k.e(f's_add_u32 s33, s37, {1024*j}')
                    k.vmem(f'buffer_load_dwordx2 {vr(hres[j],2)}, v{vX[0]}, s[40:43], s33 offen', ('h', j))
                fs.append(f)
        return fs
    for f in res_loads():
        items.append((NS - 1, ('none',), f))
    if wo and PF:
        k.srd(48, 64, 0, D * F * 2)
        k.srd(52, 66, 0, D * F * 2)
        k.e(f'v_and_b32 v{t[1]}, 15, v{vL}')
        k.e(f'v_min_u32 v{t[1]}, 13, v{t[1]}')
        k.e(f'v_mul_u32_u24 v{t[2]}, 3456, v{t[5]}')
        k.e(f'v_lshl_add_u32 v{vPF[3]}, v{t[1]}, 7, v{t[2]}')
        k.e('s_lshl_b32 s56, s39, 2')
        k.e('s_add_u32 s56, s56, s24')
        k.e(f's_mul_i32 s56, s56, {4*3456}')
        k.e('s_and_b32 s57, s35, 1')
        k.e(f's_mul_i32 s57, s57, {13*128}')
        k.e('s_add_u32 s56, s56, s57')
        k.e(f's_add_u32 s56, s56, {320*3456}')

        def pf(k):
            k.vmem(f'buffer_load_dword v{vPF[0]}, v{vPF[3]}, s[48:51], s56 offen', 'pf')
            k.vmem(f'buffer_load_dword v{vPF[1]}, v{vPF[3]}, s[52:55], s56 offen', 'pf')
        items.append((NS - 1, ('none',), pf))
    k.e(f'v_bfe_u32 v{t[0]}, v{vL}, 2, 2')
    k.e(f'v_and_b32 v{t[1]}, 3, v{vL}')
    k.e(f'v_lshrrev_b32 v{t[2]}, 1, v{t[5]}')
    k.e(f'v_and_b32 v{t[3]}, 1, v{t[5]}')
    k.e(f'v_mul_u32_u24 v{t[2]}, 16, v{t[2]}')
    k.e(f'v_lshl_add_u32 v{t[2]}, v{t[3]}, 2, v{t[2]}')
    k.e(f'v_add_u32 v{t[2]}, v{t[2]}, v{t[0]}')
    k.e(f'v_mul_u32_u24 v{t[2]}, 160, v{t[2]}')
    k.e(f'v_lshl_add_u32 v{vR[0]}, v{t[1]}, 3, v{t[2]}')
    for st in range(1, nsets):
        k.e(f'v_add_u32 v{vR[st]}, {st*65536}, v{vR[0]}')
    k.e(f'v_mul_u32_u24 v{t[0]}, 160, v{t[4]}')
    k.e(f'v_lshl_add_u32 v{t[0]}, v{t[5]}, 3, v{t[0]}')
    k.e(f'v_add_u32 v{vX[1]}, s36, v{t[0]}')
    k.e(f'v_lshl_add_u32 v{vX[2]}, v{vL}, 4, s36')

    def reads(s):
        b = s & 1
        L = []
        for j in range(5):
            for j2 in range(2):
                c, r0 = divmod(32 * s, CR)
                off, base = (c % SLOTS) * SLOT + (r0 + 8 * j2) * 160 + 32 * j, vR
                st, o = divmod(off, 65536)
                L.append((f'ds_read_b64_tr_b16 {vr(bF[b][j]+2*j2,2)}, v{base[st]} offset:{o}', ('b', s, j)))
        return L

    def mfmas(s):
        b = s & 1
        L = []
        for j in range(5):
            cin = vr(acc[j], 4) if s else '0'
            L.append((f'v_mfma_f32_16x16x32_bf16 {vr(acc[j],4)}, {vr(bF[b][j],4)}, {vr(aF[s % ABUF],4)}, {cin}',
                      [('b', s, j)], [('a', s)] if j == 0 else []))
        return L

    def sync(s):
        c = need_chunk(s)
        if s and need_chunk(s - 1) == c:
            return None

        def f(k):
            k.wait_vm([('c', cc) for cc in range(c + 1)])
            k.e('s_barrier')
            state['barrier_c'] = max(c, 1) if c < 2 else c
            release()
        return f

    def per_step(s):
        state['step'] = s
        release()

    gemm_loop(k, NS, reads, mfmas, None, sync, fillers, per_step=per_step, lookahead=LA,
              stamp_steps=(4, 8, 12, 16) if wo else (12, 24, 36, 48))
    assert not items

    if wo:
        k.wait_vm('x')
        for j in range(5):
            k.lds(f'ds_read_b64 {vr(hres[j],2)}, v{vX[1]} offset:{32*j}', ('x', j))
        sm, sq = t[0], t[1]
        k.e(f'v_mov_b32 v{t[6]}, 0x3f803f80')
        k.e(f'v_mov_b32 v{sm}, 0')
        k.e(f'v_mov_b32 v{sq}, 0')
        for j in range(5):
            k.wait_lg(('x', j))
            a = acc[j]
            k.e(f'v_lshlrev_b32 v{ep}, 16, v{hres[j]}')
            k.e(f'v_and_b32 v{ep+1}, 0xffff0000, v{hres[j]}')
            k.e(f'v_lshlrev_b32 v{ep+2}, 16, v{hres[j]+1}')
            k.e(f'v_and_b32 v{ep+3}, 0xffff0000, v{hres[j]+1}')
            for r in range(4):
                k.e(f'v_add_f32 v{a+r}, v{a+r}, v{ep+r}')
            k.e(f'v_cvt_pk_bf16_f32 v{a}, v{a}, v{a+1}')
            k.e(f'v_cvt_pk_bf16_f32 v{a+1}, v{a+2}, v{a+3}')
            k.e(f's_add_u32 s33, s37, {1024*j}')
            k.vmem(f'buffer_store_dwordx2 {vr(a,2)}, v{vX[0]}, s[40:43], s33 offen', 'st')
        for j in range(5):
            a = acc[j]
            for r in range(2):
                k.e(f'v_dot2_f32_bf16 v{sm}, v{a+r}, v{t[6]}, v{sm}')
                k.e(f'v_dot2_f32_bf16 v{sq}, v{a+r}, v{a+r}, v{sq}')
        k.e(f'v_mov_b32 v{t[2]}, v{sm}')
        k.e(f'v_mov_b32 v{t[3]}, v{sq}')
        k.e(f'v_permlane32_swap_b32 v{sm}, v{t[2]}')
        k.e(f'v_permlane32_swap_b32 v{sq}, v{t[3]}')
        k.e(f'v_add_f32 v{sm}, v{sm}, v{t[2]}')
        k.e(f'v_add_f32 v{sq}, v{sq}, v{t[3]}')
        k.e(f'v_mov_b32 v{t[2]}, v{sm}')
        k.e(f'v_mov_b32 v{t[3]}, v{sq}')
        k.e(f'v_permlane16_swap_b32 v{sm}, v{t[2]}')
        k.e(f'v_permlane16_swap_b32 v{sq}, v{t[3]}')
        k.e(f'v_add_f32 v{ep}, v{sm}, v{t[2]}')
        k.e(f'v_add_f32 v{ep+1}, v{sq}, v{t[3]}')
        k.e(f'v_lshlrev_b32 v{t[2]}, 6, v{t[4]}')
        k.e(f'v_lshlrev_b32 v{t[3]}, 28, v{t[5]}')
        k.e(f'v_or_b32 v{t[2]}, v{t[2]}, v{t[3]}')
        k.e('s_lshl_b32 s33, s28, 10')
        k.e('s_lshl_b32 s34, s26, 3')
        k.e('s_add_u32 s33, s33, s34')
        k.vmem(f'buffer_store_dwordx2 {vr(ep,2)}, v{t[2]}, s[44:47], s33 offen', 'st')
    else:
        for j in range(5):
            k.wait_vm(('h', j))
            a = acc[j]
            k.e(f'v_lshlrev_b32 v{ep}, 16, v{hres[j]}')
            k.e(f'v_and_b32 v{ep+1}, 0xffff0000, v{hres[j]}')
            k.e(f'v_lshlrev_b32 v{ep+2}, 16, v{hres[j]+1}')
            k.e(f'v_and_b32 v{ep+3}, 0xffff0000, v{hres[j]+1}')
            for r in range(4):
                k.e(f'v_add_f32 v{a+r}, v{a+r}, v{ep+r}')
            k.e(f'v_cvt_pk_bf16_f32 v{a}, v{a}, v{a+1}')
            k.e(f'v_cvt_pk_bf16_f32 v{a+1}, v{a+2}, v{a+3}')
            k.lds(f'ds_write_b64 v{vX[1]}, {vr(a,2)} offset:{32*j}', 'w')
        k.wait_lg_all()
        for i in range(3):
            k.lds(f'ds_read_b128 {vr(ep+4*i,4)}, v{vX[2]} offset:{1024*i}', ('o', i))
        for i in range(3):
            k.wait_lg(('o', i))
            if i == 2:
                set_exec(k, 32)
            k.vmem(f'buffer_store_dwordx4 {vr(ep+4*i,4)}, v{vD[i]}, s[20:23], s38 offen', 'st')
    end(k, 2 if wo else 4)
    return k, (256, 256, lds_bytes)


def gen_ffn1(LA=6, PF=1, PRE=3, HLA=3, FB=37, FB2=39, HPRIO=0, PFD=0):
    k = Kern('ffn1_kernel')
    NS, NC = 40, 10
    SLOTS, SLOT, UP = 8, 16384, 8192
    CSO = SLOTS * SLOT
    PSO = CSO + 512
    lds_bytes = PSO + 4096
    ABUF = LA + 2
    va = VAlloc(1)
    vL, r31, hh = va(), va(), va()
    t = [va() for _ in range(8)]
    base = va.n
    vAo, vG = va(), va()
    vR = [[va(), va()] for _ in range(2)]
    st8 = va(8)
    aF = [va(4) for _ in range(ABUF)]
    bF = [[va(4) for _ in range(4)] for _ in range(2)]
    acc = [va(16) for _ in range(4)]
    assert ABUF >= 8
    cs, tmp = aF[0], bF[0][0]
    vh = VAlloc(base)
    vD, vRS, vP = vh(), vh(), vh()
    vPF = [vh(), vh()]
    ha = [vh(8), vh(8)]
    hu = [vh() for _ in range(8)]
    hd = [vh(4) for _ in range(4)]

    common_prologue(k, 256)
    k.e('s_load_dwordx4 s[4:7], s[0:1], 32')
    k.e('s_load_dwordx2 s[8:9], s[0:1], 72')
    k.e(f'v_lshrrev_b32 v{t[0]}, 6, v0')
    k.e(f'v_and_b32 v{vL}, 63, v0')
    k.e(f'v_readfirstlane_b32 s24, v{t[0]}')
    k.e('s_and_b32 s25, s2, 7')
    k.e('s_lshr_b32 s39, s2, 3')
    lPf = k.newlabel('pf')
    k.e('s_cmp_ge_u32 s39, 27')
    k.e(f's_cbranch_scc1 {lPf}')
    k.e('s_and_b32 s27, s25, 1')
    k.e('s_sub_u32 s33, 14, s27')
    k.e('s_cmp_ge_u32 s39, s33')
    k.e('s_cselect_b32 s34, 1, 0')
    k.e('s_sub_u32 s33, s27, s34')
    k.e('s_mul_i32 s33, s33, 14')
    k.e('s_add_u32 s26, s39, s33')
    k.e(f'v_and_b32 v{r31}, 31, v{vL}')
    k.e(f'v_lshrrev_b32 v{hh}, 5, v{vL}')
    lHelp = k.newlabel('help')
    k.e('s_cmp_ge_u32 s24, 8')
    k.e(f's_cbranch_scc1 {lHelp}')

    k.e('s_and_b32 s28, s25, 6')
    k.e('s_add_u32 s28, s28, s34')
    k.e('s_lshl_b32 s28, s28, 3')
    k.e('s_add_u32 s28, s28, s24')
    k.e('s_mul_i32 s29, s28, 40960')
    k.e(f'v_lshlrev_b32 v{vAo}, 4, v{vL}')
    k.e('s_waitcnt lgkmcnt(0)')
    k.srd(12, 8, WS_H, SEC)
    k.srd(40, 8, WS_G, WS_G_SIZE)
    k.srd(44, 8, WS_S, WS_S_SIZE)

    def a_load(s):
        def f(k):
            k.e(f's_add_u32 s33, s29, {s*1024}')
            k.vmem(f'buffer_load_dwordx4 {vr(aF[s % ABUF],4)}, v{vAo}, s[12:15], s33 offen', ('a', s))
        return (s, f)

    fillers = [a_load(s) for s in range(NS)]
    while fillers[0][0] <= PRE:
        fillers.pop(0)[1](k)
    k.e(f'v_lshlrev_b32 v{t[5]}, 6, v{r31}')
    k.e(f'v_lshl_add_u32 v{t[5]}, v{hh}, 5, v{t[5]}')
    k.e('s_lshl_b32 s38, s28, 11')

    def statload(k):
        k.vmem(f'buffer_load_dwordx4 {vr(st8,4)}, v{t[5]}, s[44:47], s38 offen', 'stat')
        k.vmem(f'buffer_load_dwordx4 {vr(st8+4,4)}, v{t[5]}, s[44:47], s38 offen offset:16', 'stat')
    fillers.insert(8, (0, statload))
    k.e(f'v_bfe_u32 v{t[0]}, v{vL}, 2, 2')
    k.e(f'v_lshl_add_u32 v{t[1]}, v{hh}, 3, v{t[0]}')
    k.e(f'v_lshlrev_b32 v{t[1]}, 7, v{t[1]}')
    k.e(f'v_bfe_u32 v{t[2]}, v{vL}, 4, 1')
    k.e(f'v_lshl_add_u32 v{t[1]}, v{t[2]}, 5, v{t[1]}')
    k.e(f'v_and_b32 v{t[2]}, 3, v{vL}')
    k.e(f'v_lshl_add_u32 v{t[1]}, v{t[2]}, 3, v{t[1]}')
    k.e(f'v_lshrrev_b32 v{t[0]}, 1, v{t[0]}')
    k.e(f'v_lshl_add_u32 v{vR[0][0]}, v{t[0]}, 6, v{t[1]}')
    k.e(f'v_xor_b32 v{vR[0][1]}, 64, v{vR[0][0]}')
    for j in range(2):
        k.e(f'v_add_u32 v{vR[1][j]}, 65536, v{vR[0][j]}')
    k.e(f'v_bfe_u32 v{t[0]}, v{vL}, 4, 1')
    k.e(f'v_mul_u32_u24 v{t[0]}, {54*1024}, v{t[0]}')
    k.e(f'v_and_b32 v{t[1]}, 15, v{vL}')
    k.e(f'v_lshl_add_u32 v{t[0]}, v{t[1]}, 4, v{t[0]}')
    k.e(f'v_lshl_add_u32 v{vG}, v{hh}, 8, v{t[0]}')
    k.e(f's_mul_i32 s37, s28, {108*1024}')
    k.e('s_lshl_b32 s33, s26, 11')
    k.e('s_add_u32 s37, s37, s33')
    mean, k0, k1_, irs2 = t[0], t[1], t[3], t[4]
    c0 = -2.0 * math.log2(math.e) * math.sqrt(2.0 / math.pi)
    c1 = c0 * 0.044715

    def stat_math(k):
        k.wait_vm('stat')
        k.e(f'v_add_f32 v{st8}, v{st8}, v{st8+2}')
        k.e(f'v_add_f32 v{st8+1}, v{st8+1}, v{st8+3}')
        k.e(f'v_add_f32 v{st8+4}, v{st8+4}, v{st8+6}')
        k.e(f'v_add_f32 v{st8+5}, v{st8+5}, v{st8+7}')
        k.e(f'v_add_f32 v{st8}, v{st8}, v{st8+4}')
        k.e(f'v_add_f32 v{st8+1}, v{st8+1}, v{st8+5}')
        k.e(f'v_mov_b32 v{st8+2}, v{st8}')
        k.e(f'v_mov_b32 v{st8+3}, v{st8+1}')
        k.e(f'v_permlane32_swap_b32 v{st8}, v{st8+2}')
        k.e(f'v_permlane32_swap_b32 v{st8+1}, v{st8+3}')
        k.e(f'v_add_f32 v{st8}, v{st8}, v{st8+2}')
        k.e(f'v_add_f32 v{st8+1}, v{st8+1}, v{st8+3}')
        k.e(f'v_mul_f32 v{mean}, {f32(1.0/D)}, v{st8}')
        k.e(f'v_mul_f32 v{irs2}, {f32(1.0/D)}, v{st8+1}')
        k.e(f'v_fma_f32 v{irs2}, -v{mean}, v{mean}, v{irs2}')
        k.e(f'v_max_f32 v{irs2}, 0, v{irs2}')
        k.e(f'v_add_f32 v{irs2}, {f32(EPS)}, v{irs2}')
        k.e(f'v_rsq_f32 v{k0}, v{irs2}')
        k.e(f'v_mul_f32 v{k1_}, v{k0}, v{k0}')
        k.e(f'v_mul_f32 v{k1_}, v{k1_}, v{k0}')
        k.e(f'v_mul_f32 v{k1_}, {f32(c1)}, v{k1_}')
        k.e(f'v_mul_f32 v{k0}, {f32(c0)}, v{k0}')
        k.e(f'v_lshlrev_b32 v{t[2]}, 4, v{hh}')
        k.e(f'v_add_u32 v{t[2]}, {CSO}, v{t[2]}')

    def reads(s):
        b = s & 1
        L = []
        for j in range(4):
            for j2 in range(2):
                off = ((s // 4) % SLOTS) * SLOT + (UP if j >= 2 else 0) + (s % 4) * 2048 + j2 * 512
                st, o = divmod(off, 65536)
                L.append((f'ds_read_b64_tr_b16 {vr(bF[b][j]+2*j2,2)}, v{vR[st][j&1]} offset:{o}', ('b', s, j)))
        return L

    def mfmas(s):
        b = s & 1
        L = []
        for j in range(4):
            cin = vr(acc[j], 16) if s else '0'
            L.append((f'v_mfma_f32_32x32x16_bf16 {vr(acc[j],16)}, {vr(bF[b][j],4)}, {vr(aF[s % ABUF],4)}, {cin}',
                      [('b', s, j)], [('a', s)] if j == 0 else []))
        return L

    def extras(s):
        return [(stat_math, [])] if s == 20 else []

    def sync(s):
        if s % 4 and s not in (FB, FB2):
            return None
        return lambda k: k.e('s_barrier')

    gemm_loop(k, NS, reads, mfmas, extras, sync, fillers, lookahead=LA, stamp_steps=(8, 16, 24, 32))
    for fb in (FB, FB2):
        if fb >= NS:
            k.e('s_barrier')

    for j in range(2):
        k.e(f's_add_u32 s34, s37, {1024*j}')
        for jq in range(4):
            for gu in range(2):
                k.lds(f'ds_read_b128 {vr(cs + (gu*4+jq)*4, 4)}, v{t[2]} offset:{gu*256 + j*128 + jq*32}', ('cs', jq))
        for jq2 in range(2):
            js = (2 * jq2, 2 * jq2 + 1)
            idx = [(jq, i) for jq in js for i in range(4)]
            G = lambda q: acc[j] + 4 * q[0] + q[1]
            U = lambda q: acc[2 + j] + 4 * q[0] + q[1]
            k.wait_lg([('cs', jq) for jq in js])
            for q in idx:
                k.e(f'v_fma_f32 v{G(q)}, -v{mean}, v{cs+4*q[0]+q[1]}, v{G(q)}')
            for n_, q in enumerate(idx):
                k.e(f'v_mul_f32 v{tmp+n_}, v{G(q)}, v{G(q)}')
            for n_, q in enumerate(idx):
                k.e(f'v_fma_f32 v{tmp+n_}, v{tmp+n_}, v{k1_}, v{k0}')
            for n_, q in enumerate(idx):
                k.e(f'v_mul_f32 v{tmp+n_}, v{tmp+n_}, v{G(q)}')
            for n_, q in enumerate(idx):
                k.e(f'v_exp_f32 v{tmp+n_}, v{tmp+n_}')
                k.e(f'v_fma_f32 v{U(q)}, -v{mean}, v{cs+16+4*q[0]+q[1]}, v{U(q)}')
            for n_, q in enumerate(idx):
                k.e(f'v_fma_f32 v{tmp+n_}, v{tmp+n_}, v{irs2}, v{irs2}')
            for n_, q in enumerate(idx):
                k.e(f'v_rcp_f32 v{tmp+n_}, v{tmp+n_}')
                k.e(f'v_mul_f32 v{G(q)}, v{G(q)}, v{U(q)}')
            for n_, q in enumerate(idx):
                k.e(f'v_mul_f32 v{G(q)}, v{G(q)}, v{tmp+n_}')
            g0 = acc[j] + 8 * jq2
            o = acc[2 + j] + 8 * jq2
            for i in range(4):
                k.e(f'v_cvt_pk_bf16_f32 v{o+i}, v{g0+2*i}, v{g0+2*i+1}')
            k.vmem(f'buffer_store_dwordx4 {vr(o,4)}, v{vG}, s[40:43], s34 offen offset:{512*jq2}', 'st')
    k.dump_stamps(4, 3)
    k.e('s_endpgm')

    k.label(lHelp)
    k.vm, k.lg = [], []
    if HPRIO:
        k.e(f's_setprio {HPRIO}')
    k.e('s_sub_u32 s35, s24, 8')
    k.e(f's_mul_i32 s30, s35, {16*3456}')
    k.e('s_lshl_b32 s31, s26, 7')
    k.e('s_add_u32 s30, s30, s31')
    k.e('s_lshl_b32 s32, s35, 11')
    k.e(f'v_lshrrev_b32 v{t[0]}, 3, v{vL}')
    k.e(f'v_mul_u32_u24 v{t[0]}, 3456, v{t[0]}')
    k.e(f'v_bfe_u32 v{t[1]}, v{vL}, 4, 1')
    k.e(f'v_lshlrev_b32 v{t[1]}, 2, v{t[1]}')
    k.e(f'v_and_b32 v{t[2]}, 7, v{vL}')
    k.e(f'v_xor_b32 v{t[2]}, v{t[2]}, v{t[1]}')
    k.e(f'v_lshl_add_u32 v{vD}, v{t[2]}, 4, v{t[0]}')
    k.e(f'v_lshl_add_u32 v{vRS}, v{vL}, 4, s32')
    k.e(f'v_lshlrev_b32 v{t[5]}, 5, v{t[2]}')
    k.e(f'v_lshl_add_u32 v{t[5]}, v{t[1]}, 7, v{t[5]}')
    k.e('s_lshl_b32 s33, s35, 10')
    k.e(f's_add_u32 s33, s33, {PSO}')
    k.e(f'v_add_u32 v{t[5]}, s33, v{t[5]}')
    for r in range(8):
        k.e(f'v_mov_b32 v{ha[0]+r}, 0')
        k.e(f'v_mov_b32 v{ha[1]+r}, 0')
    k.e(f'v_lshlrev_b32 v{t[3]}, 3, v{vL}')
    k.e(f'v_add_u32 v{t[3]}, {CSO}, v{t[3]}')
    k.e('s_waitcnt lgkmcnt(0)')
    k.srd(16, 4, 0, D * F * 2)
    k.srd(20, 6, 0, D * F * 2)

    def issue_chunk(c):
        fs = []
        for i in range(2):
            for gu in range(2):
                def f(k, i=i, gu=gu):
                    k.e(f's_add_u32 m0, s32, {(c % SLOTS)*SLOT + gu*UP + i*1024}')
                    k.e(f's_add_u32 s33, s30, {(c*64 + i*8)*3456}')
                    k.vmem(f'buffer_load_dwordx4 v{vD}, s[{16+4*gu}:{19+4*gu}], s33 offen lds', ('c', c))
                fs.append(f)
        return fs

    for c in range(HLA):
        for f in issue_chunk(c):
            f(k)
    for c in range(NC):
        k.wait_vm(('c', c))
        off = (c % SLOTS) * SLOT
        if off >= 65536:
            k.e(f'v_add_u32 v{t[0]}, 65536, v{vRS}')
        ra = t[0] if off >= 65536 else vRS
        for i in range(4):
            k.lds(f'ds_read_b128 {vr(hd[i],4)}, v{ra} offset:{off % 65536 + (i>>1)*UP + (i&1)*1024}', ('h', i))
        k.e('s_barrier')
        work = []
        for i in range(4):
            work.append(lambda k, i=i: k.wait_lg(('h', i)))
            for r in range(4):
                work.append(f'v_lshlrev_b32 v{hu[2*r]}, 16, v{hd[i]+r}')
                work.append(f'v_and_b32 v{hu[2*r+1]}, 0xffff0000, v{hd[i]+r}')
            for r in range(8):
                work.append(f'v_add_f32 v{ha[i>>1]+r}, v{ha[i>>1]+r}, v{hu[r]}')
        side = issue_chunk(c + HLA) if c + HLA < NC else []
        interleave(k, work, side, 4)
    allr = [ha[g_] + r for g_ in range(2) for r in range(8)]
    for r in allr:
        k.e(f'v_add_f32_dpp v{r}, v{r}, v{r} row_ror:8 row_mask:0xf bank_mask:0xf')
    for n_ in range(0, 16, 8):
        for m_ in range(8):
            k.e(f'v_mov_b32 v{hu[m_]}, v{allr[n_+m_]}')
        for m_ in range(8):
            k.e(f'v_permlane32_swap_b32 v{allr[n_+m_]}, v{hu[m_]}')
        for m_ in range(8):
            k.e(f'v_add_f32 v{allr[n_+m_]}, v{allr[n_+m_]}, v{hu[m_]}')
    k.e('s_mov_b64 exec, 0x00ff00ff')
    for g_ in range(2):
        for r in range(0, 8, 4):
            k.lds(f'ds_write_b128 v{t[5]}, {vr(ha[g_]+r,4)} offset:{g_*256 + r*4}', 'w')
    k.e('s_mov_b64 exec, -1')
    k.wait_lg_all()
    k.e('s_barrier')
    k.e('s_cmp_lg_u32 s35, 0')
    k.e(f's_cbranch_scc1 {k.name}_end')
    for p in range(8):
        k.lds(f'ds_read_b64 {vr(ha[0]+2*p,2)}, v{t[3]} offset:{512 + 512*p}', 'p')
    k.wait_lg_all()
    for st_ in (8, 4, 2):
        for r in range(st_):
            k.e(f'v_add_f32 v{ha[0]+r}, v{ha[0]+r}, v{ha[0]+r+st_}')
    k.lds(f'ds_write_b64 v{t[3]}, {vr(ha[0],2)}', 'w')
    k.wait_lg_all()
    k.e('s_barrier')
    k.e('s_endpgm')
    k.label(lPf)
    k.vm, k.lg = [], []
    if PF:
        k.e('s_sub_u32 s56, s39, 27')
        k.e('s_mul_i32 s56, s56, 12')
        k.e('s_add_u32 s56, s56, s24')
        k.e('s_lshl_b32 s56, s56, 13')
        k.e(f'v_lshlrev_b32 v{vP}, 7, v{vL}')
        k.e('s_waitcnt lgkmcnt(0)')
        k.srd(48, 8, WS_PD, F * D * 2)
        if PFD:
            k.e(f's_sleep {PFD}')
        for i in range(5):
            k.e(f's_add_u32 s57, s56, {60*8192*i}')
            k.e(f's_min_u32 s57, s57, {F*D*2}')
            k.vmem(f'buffer_load_dword v{vPF[0]}, v{vP}, s[48:51], s57 offen', 'pf')
    k.label(f'{k.name}_end')
    k.e('s_endpgm')
    return k, (256, 768, lds_bytes)


HEADER = open('sequential_preLN__sliding_block__geglu_ffn__prompt.s.ref').read().split('; Override')[0]


def envkw(prefix):
    import os
    kw = {}
    for key, val in os.environ.items():
        if key.startswith(prefix + '_'):
            kw[key[len(prefix) + 1:]] = int(val)
    return kw


def apply_store_flavour(text, flav):
    if not flav:
        return text
    out = []
    for line in text.split('\n'):
        if line.strip().startswith('buffer_store') and 's[96:99]' not in line:
            line = line + ' ' + flav
        out.append(line)
    return '\n'.join(out)


def build(path):
    ks = [gen_qkv(**envkw('K1')), gen_attn(**envkw('K2')), gen_n640('wo', **envkw('K3')), gen_ffn1(**envkw('K4')),
          gen_n640('down', **envkw('K5'))]
    out = [HEADER.rstrip('\n')]
    for k, (g, b, l) in ks:
        out.append(f'; @launch kernel={k.name} grid=({g},1,1) block=({b},1,1) lds={l}')
    out.append('.amdgcn_target "amdgcn-amd-amdhsa--gfx950"')
    out.append('.text')
    import os
    for k, _ in ks:
        out.append(apply_store_flavour(k.text(), os.environ.get('STF', '')))
    out.append('.section .rodata,"a"')
    for k, _ in ks:
        out.append(k.descriptor())
    open(path, 'w').write('\n'.join(out))
    for k, c in ks:
        print(k.name, c, 'vgpr', k.maxv + 1, 'sgpr', k.maxs + 1, 'instr', k.ninstr)


if __name__ == '__main__':
    import os
    if os.environ.get('DEBUG'):
        Kern.DEBUG = True
    build(sys.argv[1] if len(sys.argv) > 1 else 'sequential_preLN__sliding_block__geglu_ffn__prompt.s')
```
